```python
import torch

def _softmax(x, axis=-1):
    return torch.softmax(x, dim=axis)
def _gelu(x):
    return torch.nn.functional.gelu(x, approximate="tanh")
def _silu(x):
    return torch.nn.functional.silu(x)
def _sigmoid(x):
    return torch.sigmoid(x)
def _layernorm(x, axis=-1, eps=1e-5):
    m = x.mean(dim=axis, keepdim=True)
    v = x.var(dim=axis, keepdim=True, unbiased=False)
    return (x - m) / torch.sqrt(v + eps)
def _scatter_add(tgt, idx, src, axis=0):
    return tgt.clone().index_add_(axis, idx, src)
def _segment_sum(src, seg, n):
    out = torch.zeros((n,) + src.shape[1:], dtype=src.dtype)
    return out.index_add_(0, seg, src)
def _pad(x, pw):
    flat = tuple(v for pair in reversed(pw) for v in pair)
    return torch.nn.functional.pad(x, flat)

kernel_name = 'standalone__paged_block_table_kv_pagedattention__sampling'

def setup_inputs():

    _w = (lambda a: (lambda t: t.to(torch.bfloat16) if t.is_floating_point() else t)(torch.as_tensor(a)))
    B, Hq, Hkv, Sq, Skv, D = 16, 32, 8, 16, 4096, 128
    bs = 16
    nbps = max(1, Skv // bs)
    num_phys = B * nbps + 4
    bt = torch.randperm(num_phys)[: B * nbps].reshape(B, nbps).to(torch.int64)
    cl = (nbps * bs - (torch.arange(1, B + 1, dtype=torch.int64) * 2654435761) % max(1, nbps * bs // 2)).to(torch.int64)
    return {
        "q": _w((lambda *s: torch.randn(*s, dtype=torch.bfloat16) * 0.8)(B, Hq, Sq, D)),
        "k_cache": _w((lambda *s: torch.randn(*s, dtype=torch.bfloat16) * 0.8)(num_phys, bs, Hkv, D)),
        "v_cache": _w((lambda *s: torch.randn(*s, dtype=torch.bfloat16) * 0.05)(num_phys, bs, Hkv, D)),
        "block_table": _w(bt),
        "context_lens": _w(cl),
    }

def reference(q, k_cache, v_cache, block_table, context_lens):
    B, Hq, Sq, D = q.shape
    bs = k_cache.shape[1]
    Hkv = k_cache.shape[2]
    nbps = block_table.shape[1]
    Skv = nbps * bs
    bt = block_table.reshape(-1)
    k = (lambda x, *d: x.permute(*d))(k_cache[bt].reshape(B, Skv, Hkv, D), 0, 2, 1, 3)
    v = (lambda x, *d: x.permute(*d))(v_cache[bt].reshape(B, Skv, Hkv, D), 0, 2, 1, 3)
    g = Hq // Hkv
    qg = q.reshape(B, Hkv, g, Sq, D)
    scores = torch.einsum("bhgqd,bhkd->bhgqk", qg, k) * (D ** -0.5)
    pos = torch.arange(Skv)
    msk = pos[None, :] < context_lens[:, None]
    scores = torch.where(msk[:, None, None, None, :], scores, -1e9)
    p = _softmax(scores, axis=-1)
    out = torch.einsum("bhgqk,bhkd->bhgqd", p, v)
    return out.reshape(B, Hq, Sq, D)
```

```python
import argparse, struct, math

KN = "standalone__paged_block_table_kv_pagedattention__sampling"

def f2u(f):
    return struct.unpack("<I", struct.pack("<f", f))[0]

class Asm:
    def __init__(self):
        self.lines = []
        self.nlab = 0
    def __call__(self, s):
        for l in s.strip("\n").split("\n"):
            l = l.strip()
            if not l: continue
            if l.endswith(":") or l.startswith("."):
                self.lines.append(l)
            else:
                self.lines.append("    " + l)
    def label(self, p="L"):
        self.nlab += 1
        return f"{p}_{self.nlab}"
    def text(self):
        return "\n".join(self.lines) + "\n"

def vr(b, n=1):
    return f"v{b}" if n == 1 else f"v[{b}:{b+n-1}]"
def sr(b, n=1):
    return f"s{b}" if n == 1 else f"s[{b}:{b+n-1}]"

def gen(o):
    NS = o.ns; D = NS - 1; SLOT = 16384
    LIST = NS * SLOT
    LDS = LIST + 512
    KVB = 4100 * 32768
    OOB = KVB
    WSB = 8 * 32 * 4 * 9216
    nt = " nt" if o.nt else ""
    a = Asm()
    hdr = open("cdna_kernels/%s.s.ref" % KN).read().split("\n")
    for l in hdr:
        if l.startswith("; @launch"): break
        a.lines.append(l)
    a.lines.append(f"; @launch grid=(256,1,1) block=(512,1,1) lds={LDS}")
    a(f"""
.amdgcn_target "amdgcn-amd-amdhsa--gfx950"
.text
.globl {KN}_kernel
.p2align 8
.type {KN}_kernel,@function
{KN}_kernel:
""")
    sH, sIDX, sW, sOWN = 24, 25, 26, 27
    sKA = 36
    sT0, sT1, sT2, sT3 = 28, 29, 30, 31
    sSTAMP = 92
    def srd(base, ptr, nbytes):
        a(f"""
        s_mov_b32 s{base}, s{ptr}
        s_and_b32 s{base+1}, s{ptr+1}, 0xffff
        s_mov_b32 s{base+2}, {hex(nbytes)}
        s_mov_b32 s{base+3}, 0x20000
        """)
    def stamp(k, vtmp):
        if not o.stamps: return
        a(f"""
        s_memrealtime s[96:97]
        s_waitcnt lgkmcnt(0)
        v_mov_b32 v{vtmp}, s96
        v_mov_b32 v{vtmp+1}, s97
        s_lshl_b32 s98, s2, 3
        s_add_u32 s98, s98, s{sW}
        s_lshl_b32 s98, s98, 6
        s_add_u32 s98, s98, {400*1024*1024 + 8*k}
        v_mov_b32 v{vtmp+2}, 0
        s_mov_b64 s[100:101], exec
        s_mov_b64 exec, 1
        buffer_store_dwordx2 v[{vtmp}:{vtmp+1}], v{vtmp+2}, s[{sSTAMP}:{sSTAMP+3}], s98 offen
        s_mov_b64 exec, s[100:101]
        """)
    a(f"""
    s_cmp_ge_u32 s2, 256
    s_cbranch_scc1 L_end
    s_load_dwordx16 s[{sKA}:{sKA+15}], s[0:1], 0
    """)
    if o.stamps:
        a("s_memrealtime s[90:91]")
    a(f"""
    v_lshrrev_b32 v1, 6, v0
    s_and_b32 s{sH}, s2, 7
    v_readfirstlane_b32 s{sW}, v1
    s_lshr_b32 s{sIDX}, s2, 3
    s_cmp_lt_u32 s{sIDX}, 16
    s_cselect_b32 s{sOWN}, 1, 0
    s_and_b32 s{sIDX}, s{sIDX}, 15
    v_and_b32 v1, 63, v0
    s_cmp_ge_u32 s{sW}, 4
    s_cbranch_scc1 L_producer
    """)
    vLane, vG4, vTA, vTB = 1, 2, 3, 199
    vKa = 4; vVa = 8; Kf = 16; Vf = 48; Qf = 80; S = 96; P = 104; O = 108; L = 140; ONES = 144
    MC = 148; T0 = 149; X = 150; T1 = 158; T2 = 159; PB = 160; vPoll = 196; vOutOff = 197; vWsOff = 198
    vDbg = 200; vList = 201; vRec = 204; vNinf = 208; vST = 212
    sWS, sOUT, sDBG = 4, 8, 12
    sC, sTH, sREM, sEVT, sSLOT, sDELTA, sNP, sHM, sB, sNV, sBIT, sDONE, sCUR, sPOLL, sPI, sZQ = 16, 17, 18, 19, 20, 21, 22, 23, 32, 33, 34, 35, 52, 53, 54, 55
    sM0 = 56
    sSL = 72
    cscale = math.log2(math.e) / math.sqrt(128.0)
    a(f"""
    v_lshrrev_b32 v{vTA}, 4, v{vLane}
    v_lshlrev_b32 v{vG4}, 2, v{vTA}
    v_and_b32 v{vTB}, 15, v{vLane}
    v_xor_b32 v{vKa}, v{vTA}, v{vTB}
    v_lshlrev_b32 v{vKa}, 4, v{vKa}
    v_lshl_add_u32 v{vKa}, v{vTB}, 8, v{vKa}
    v_xor_b32 v{vKa+1}, 64, v{vKa}
    v_xor_b32 v{vKa+2}, 0x80, v{vKa}
    v_xor_b32 v{vKa+3}, 0xc0, v{vKa}
    v_lshlrev_b32 v{vOutOff}, 8, v{vTB}
    v_lshl_add_u32 v{vOutOff}, v{vTA}, 3, v{vOutOff}
    v_lshlrev_b32 v{vWsOff}, 4, v{vLane}
    v_lshrrev_b32 v{vTA}, 2, v{vLane}
    v_and_b32 v{vTB}, 7, v{vTA}
    v_lshlrev_b32 v{vTB}, 5, v{vTB}
    v_lshl_add_u32 v{vVa}, v{vTA}, 8, v{vTB}
    v_and_b32 v{vTB}, 3, v{vLane}
    v_lshl_add_u32 v{vVa}, v{vTB}, 3, v{vVa}
    v_add_u32 v{vVa}, 0x2000, v{vVa}
    """)
    for n in range(1, 8):
        a(f"v_xor_b32 v{vVa+n}, {n*32}, v{vVa}")
    a(f"""
    s_lshl_b32 s{sT0}, s{sH}, 2
    s_add_u32 s{sT0}, s{sT0}, s{sW}
    s_lshl_b32 s{sT0}, s{sT0}, 3
    v_mov_b32 v{vDbg}, s{sT0}
    v_mov_b32 v{vList}, {LIST}
    v_mov_b32 v{vNinf}, 0xff800000
    s_mov_b32 s{sC}, {hex(f2u(cscale))}
    s_mov_b32 s{sTH}, {hex(f2u(o.thr))}
    s_mov_b32 s{sSLOT}, 0
    s_mov_b32 s{sSL}, {SLOT}
    s_mov_b32 s{sPI}, 0
    """)
    for i in range(4):
        a(f"v_mov_b32 v{ONES+i}, 0x3f803f80")
    a("s_waitcnt lgkmcnt(0)")
    srd(sWS, sKA + 14, WSB)
    srd(sOUT, sKA + 10, 2097152)
    srd(sDBG, sKA + 12, 256)
    if o.stamps:
        srd(sSTAMP, sKA + 14, 537395200)
        a(f"""
        v_mov_b32 v{vST}, s90
        v_mov_b32 v{vST+1}, s91
        s_lshl_b32 s98, s2, 3
        s_add_u32 s98, s98, s{sW}
        s_lshl_b32 s98, s98, 6
        s_add_u32 s98, s98, {400*1024*1024}
        v_mov_b32 v{vST+2}, 0
        s_mov_b64 exec, 1
        buffer_store_dwordx2 v[{vST}:{vST+1}], v{vST+2}, s[{sSTAMP}:{sSTAMP+3}], s98 offen
        s_mov_b64 exec, -1
        """)
        stamp(1, vST)
    a(f"""
    s_barrier
    """)
    stamp(2, vST)
    a(f"""
    ds_read_b64 v[{vRec}:{vRec+1}], v{vList}
    s_waitcnt lgkmcnt(0)
    v_readfirstlane_b32 s{sNP}, v{vRec}
    v_readfirstlane_b32 s{sHM}, v{vRec+1}
    s_cmp_eq_u32 s{sNP}, 0
    s_cbranch_scc1 L_end
L_piece:
    ds_read_b128 v[{vRec}:{vRec+3}], v{vList} offset:16
    s_lshl_b32 s{sT0}, s{sW}, 12
    """)
    for s in range(4):
        a(f"v_add_u32 v{X+s}, s{sT0}, v{vKa+s}")
    if not o.nocompute:
        for s in range(4):
            a(f"ds_read_b128 {vr(Qf+4*s,4)}, v{X+s}")
    a(f"v_add_u32 v{vList}, 16, v{vList}")
    for i in range(36):
        a(f"v_mov_b32 v{O+i}, 0")
    for i in range(32):
        a(f"v_mov_b32 v{Vf+i}, 0")
    for i in range(8):
        a(f"v_mov_b32 v{S+i}, v{vNinf}")
    a(f"v_mov_b32 v{MC}, {hex(f2u(-3.0e38))}")
    def adv_slot_scalar():
        a(f"""
        s_add_u32 s{sSLOT}, s{sSLOT}, 1
        s_cmp_eq_u32 s{sSLOT}, {NS}
        s_cselect_b32 s{sSLOT}, 0, s{sSLOT}
        s_cselect_b32 s{sDELTA}, {hex((-(NS-1)*SLOT) & 0xffffffff)}, s{sSL}
        """)
    adv_slot_scalar()
    for i in range(12):
        a(f"v_add_u32 v{vKa+i}, s{sDELTA}, v{vKa+i}")
    a(f"""
    s_waitcnt lgkmcnt(0)
    v_readfirstlane_b32 s{sB}, v{vRec}
    v_readfirstlane_b32 s{sREM}, v{vRec+1}
    v_readfirstlane_b32 s{sNV}, v{vRec+2}
    v_readfirstlane_b32 s{sZQ}, v{vRec+3}
    s_mov_b32 s{sDONE}, 0
    s_mov_b32 s{sCUR}, 0
    v_mov_b32 v{vPoll}, 0
    s_min_u32 s{sEVT}, s{sREM}, {o.kp}
    s_cmp_eq_u32 s{sHM}, 0
    s_cselect_b32 s{sEVT}, 0, s{sEVT}
    s_cmp_eq_u32 s{sZQ}, 0
    s_cbranch_scc1 L_kv
    """)
    for i in range(16):
        a(f"v_mov_b32 v{Qf+i}, 0")
    a(f"""
L_kv:
    s_cmp_eq_u32 s{sREM}, s{sEVT}
    s_cbranch_scc1 L_service
L_kvbar:
    s_barrier
L_body:
    """)
    if not o.nocompute:
        for t in range(2):
            for s in range(4):
                off = f" offset:{4096*t}" if t else ""
                a(f"ds_read_b128 {vr(Kf+(t*4+s)*4,4)}, v{vKa+s}{off}")
        a(f"""
        v_max3_f32 v{T0}, v{S}, v{S+1}, v{S+2}
        v_max3_f32 v{T1}, v{S+3}, v{S+4}, v{S+5}
        v_max3_f32 v{T0}, v{T0}, v{S+6}, v{S+7}
        v_max_f32 v{T0}, v{T0}, v{T1}
        v_fma_f32 v{T1}, v{T0}, s{sC}, -v{MC}
        v_cmp_lt_f32 vcc, s{sTH}, v{T1}
        s_cbranch_vccnz L_rare
L_back:
        """)
        for j in range(8):
            a(f"v_fma_f32 v{X+j}, v{S+j}, s{sC}, -v{MC}")
        for j in range(8):
            a(f"v_exp_f32 v{X+j}, v{X+j}")
        a("s_nop 0")
        for j in range(4):
            a(f"v_cvt_pk_bf16_f32 v{P+j}, v{X+2*j}, v{X+2*j+1}")
        a(f"s_waitcnt lgkmcnt(0)")
        a(f"s_cmp_eq_u32 s{sREM}, 0")
        for n in range(8):
            a(f"v_mfma_f32_16x16x32_bf16 {vr(O+4*n,4)}, {vr(Vf+4*n,4)}, {vr(P,4)}, {vr(O+4*n,4)}")
            a(f"ds_read_b64_tr_b16 {vr(Vf+4*n,2)}, v{vVa+n}")
            a(f"ds_read_b64_tr_b16 {vr(Vf+4*n+2,2)}, v{vVa+n} offset:4096")
        a(f"v_mfma_f32_16x16x32_bf16 {vr(L,4)}, {vr(ONES,4)}, {vr(P,4)}, {vr(L,4)}")
        a(f"s_cbranch_scc1 L_fin")
        adv_slot_scalar()
        k = 0
        for s in range(4):
            for t in range(2):
                c = "0" if s == 0 else vr(S+4*t,4)
                a(f"v_mfma_f32_16x16x32_bf16 {vr(S+4*t,4)}, {vr(Kf+(t*4+s)*4,4)}, {vr(Qf+4*s,4)}, {c}")
                for _ in range(2):
                    if k < 12:
                        a(f"v_add_u32 v{vKa+k}, s{sDELTA}, v{vKa+k}"); k += 1
    else:
        a(f"""
L_back:
        s_cmp_eq_u32 s{sREM}, 0
        s_cbranch_scc1 L_fin
        """)
    a(f"""
    s_sub_u32 s{sREM}, s{sREM}, 1
    s_waitcnt lgkmcnt(0)
    s_cmp_lg_u32 s{sREM}, 0
    s_cbranch_scc1 L_kv
    """)
    a(f"""
    s_cmp_ge_i32 s{sNV}, 32
    s_nop 7
    s_cbranch_scc1 L_body
    """)
    for t in range(2):
        for r in range(4):
            j = t*4 + r
            a(f"s_sub_u32 s{sT0}, s{sNV}, {16*t+r}")
            a(f"v_cmp_gt_i32 s[{sM0+2*j}:{sM0+2*j+1}], s{sT0}, v{vG4}")
    a("s_nop 1")
    for j in range(8):
        a(f"v_cndmask_b32 v{S+j}, v{vNinf}, v{S+j}, s[{sM0+2*j}:{sM0+2*j+1}]")
    a("s_branch L_body")
    a(f"""
L_rare:
    v_mov_b32 v{T1}, v{T0}
    s_nop 1
    v_permlane32_swap_b32 v{T0}, v{T1}
    s_nop 1
    v_max_f32 v{T0}, v{T0}, v{T1}
    v_mov_b32 v{T1}, v{T0}
    s_nop 1
    v_permlane16_swap_b32 v{T0}, v{T1}
    s_nop 1
    v_max_f32 v{T0}, v{T0}, v{T1}
    v_mul_f32 v{T0}, s{sC}, v{T0}
    v_max_f32 v{T0}, v{T0}, v{MC}
    v_sub_f32 v{T1}, v{MC}, v{T0}
    v_exp_f32 v{T1}, v{T1}
    v_mov_b32 v{MC}, v{T0}
    s_nop 0
    """)
    for i in range(36):
        a(f"v_mul_f32 v{O+i}, v{T1}, v{O+i}")
    a("s_branch L_back")
    a(f"""
L_service:
    s_mov_b32 s{sT3}, 0
L_service2:
    s_waitcnt vmcnt(0)
    v_readfirstlane_b32 s{sPOLL}, v{vPoll}
    s_cmp_eq_u32 s{sCUR}, 0
    s_cbranch_scc1 L_sv_nofold
    v_max_f32 v{T0}, v{MC}, v{PB+33}
    v_sub_f32 v{T1}, v{MC}, v{T0}
    v_sub_f32 v{T2}, v{PB+33}, v{T0}
    v_exp_f32 v{T1}, v{T1}
    v_exp_f32 v{T2}, v{T2}
    v_mov_b32 v{MC}, v{T0}
    """)
    for i in range(33):
        a(f"v_mul_f32 v{O+i}, v{T1}, v{O+i}")
    for i in range(33):
        a(f"v_fmac_f32 v{O+i}, v{T2}, v{PB+i}")
    a(f"""
    s_or_b32 s{sDONE}, s{sDONE}, s{sCUR}
    s_mov_b32 s{sCUR}, 0
L_sv_nofold:
    s_lshr_b32 s{sT0}, s{sPOLL}, s{sB}
    s_and_b32 s{sT0}, s{sT0}, s{sHM}
    s_andn2_b32 s{sT0}, s{sT0}, s{sDONE}
    s_cbranch_scc0 L_sv_noload
    s_ff1_i32_b32 s{sT1}, s{sT0}
    s_lshl_b32 s{sCUR}, 1, s{sT1}
    s_add_u32 s{sT1}, s{sT1}, s{sB}
    s_lshl_b32 s{sT2}, s{sH}, 5
    s_add_u32 s{sT1}, s{sT1}, s{sT2}
    s_lshl_b32 s{sT1}, s{sT1}, 2
    s_add_u32 s{sT1}, s{sT1}, s{sW}
    s_mul_i32 s{sT1}, s{sT1}, 9216
    """)
    for n in range(9):
        if n in (4, 8):
            a(f"s_add_u32 s{sT1}, s{sT1}, 4096")
        a(f"buffer_load_dwordx4 {vr(PB+4*n,4)}, v{vWsOff}, s[{sWS}:{sWS+3}], s{sT1} offen offset:{(n%4)*1024} sc1")
    a(f"""
L_sv_noload:
    s_or_b32 s{sT0}, s{sDONE}, s{sCUR}
    s_cmp_eq_u32 s{sT0}, s{sHM}
    s_cbranch_scc1 L_sv_nopoll
    buffer_load_dword v{vPoll}, v{vDbg}, s[{sDBG}:{sDBG+3}], 0 offen sc1
L_sv_nopoll:
    s_cmp_gt_u32 s{sREM}, {o.kfast}
    s_cselect_b32 s{sT0}, 2, 1
    s_sub_u32 s{sEVT}, s{sREM}, s{sT0}
    s_cmp_eq_u32 s{sDONE}, s{sHM}
    s_cselect_b32 s{sEVT}, 0, s{sEVT}
    s_cmp_eq_u32 s{sT3}, 0
    s_cbranch_scc1 L_kvbar
    s_branch L_own_wait
    """)
    a(f"""
L_fin:
    s_waitcnt lgkmcnt(0)
    s_cmp_eq_u32 s{sOWN}, 0
    s_nop 7
    """)
    stamp(3, vST)
    if o.stamps: a(f"s_cmp_eq_u32 s{sOWN}, 0")
    a(f"""
    s_cbranch_scc1 L_publish
    s_mov_b32 s{sT3}, 1
L_own_wait:
    s_add_u32 s{sT3}, s{sT3}, 1
    s_cmp_gt_u32 s{sT3}, 0x8000
    s_cbranch_scc1 L_own_out
    s_cmp_lg_u32 s{sDONE}, s{sHM}
    s_cbranch_scc1 L_service2
L_own_out:
    v_rcp_f32 v{T0}, v{L}
    s_lshl_b32 s{sT0}, s{sB}, 3
    s_add_u32 s{sT0}, s{sT0}, s{sH}
    s_lshl_b32 s{sT0}, s{sT0}, 2
    s_add_u32 s{sT0}, s{sT0}, s{sW}
    s_lshl_b32 s{sT0}, s{sT0}, 12
    """)
    for n in range(8):
        for r in range(4):
            a(f"v_mul_f32 v{O+4*n+r}, v{T0}, v{O+4*n+r}")
        a(f"v_cvt_pk_bf16_f32 v{Kf+2*n}, v{O+4*n}, v{O+4*n+1}")
        a(f"v_cvt_pk_bf16_f32 v{Kf+2*n+1}, v{O+4*n+2}, v{O+4*n+3}")
        a(f"buffer_store_dwordx2 {vr(Kf+2*n,2)}, v{vOutOff}, s[{sOUT}:{sOUT+3}], s{sT0} offen offset:{32*n}")
    if o.stamps:
        a("s_waitcnt vmcnt(0)")
        stamp(4, vST)
    a(f"""
    s_endpgm
L_publish:
    v_mov_b32 v{L+1}, v{MC}
    s_add_u32 s{sBIT}, s{sIDX}, s{sB}
    s_lshl_b32 s{sT1}, s{sH}, 5
    s_add_u32 s{sT1}, s{sT1}, s{sBIT}
    s_lshl_b32 s{sT1}, s{sT1}, 2
    s_add_u32 s{sT1}, s{sT1}, s{sW}
    s_mul_i32 s{sT1}, s{sT1}, 9216
    """)
    for n in range(9):
        if n in (4, 8):
            a(f"s_add_u32 s{sT1}, s{sT1}, 4096")
        a(f"buffer_store_dwordx4 {vr(O+4*n,4)}, v{vWsOff}, s[{sWS}:{sWS+3}], s{sT1} offen offset:{(n%4)*1024} sc1")
    a(f"""
    s_lshl_b32 s{sT0}, 1, s{sBIT}
    v_mov_b32 v{T0}, s{sT0}
    s_waitcnt vmcnt(0)
    s_mov_b64 exec, 1
    buffer_atomic_add v{T0}, v{vDbg}, s[{sDBG}:{sDBG+3}], 0 offen sc1
    s_mov_b64 exec, -1
    """)
    stamp(4, vST)
    a(f"""
    s_add_u32 s{sPI}, s{sPI}, 1
    s_cmp_ge_u32 s{sPI}, s{sNP}
    s_cbranch_scc1 L_end
    s_barrier
    s_branch L_piece
    """)
    vG, vR, vRow, vKoff, vVoff, vQoff, vCL = 2, 3, 4, 5, 6, 7, 8
    vA, vB_, vCLE, vN, vN1, vS, vRm, vPE, vPS, vLen, vLen1, vStart, vFl, vF, vZQ = 9, 10, 11, 12, 13, 14, 15, 16, 17, 18, 19, 20, 21, 22, 23
    vE0, vE1 = 24, 25
    vBT = 26
    vAdd0 = 32; vAdd1 = 35; vBoff = 38; vFm1 = 41; vZero = 44; vQv = 45; vRel = 46; vTmp = 50
    vRecP = 56
    vSTp = 60
    sK, sV, sQ, sBT, sCLs = 4, 8, 12, 16, 20
    sPL, sPB, sE0, sE1, sCo, sCh, sMask, sFt, sFi, sP0, sP1 = 32, 33, 34, 35, 52, 53, 54, 55, 56, 57, 58
    sX0, sX1, sX2, sX3, sX4, sX5 = 59, 60, 61, 62, 63, 64
    sMP = 66
    a(f"""
L_producer:
    v_lshrrev_b32 v{vG}, 4, v1
    v_and_b32 v{vR}, 15, v1
    s_sub_u32 s{sT0}, s{sW}, 4
    s_lshl_b32 s{sPB}, s{sT0}, 10
    s_lshl_b32 s{sT0}, s{sT0}, 2
    s_lshl_b32 s{sT1}, s{sH}, 8
    v_add_u32 v{vRow}, s{sT0}, v{vG}
    v_xor_b32 v{vA}, v{vR}, v{vRow}
    v_lshlrev_b32 v{vA}, 4, v{vA}
    v_lshl_add_u32 v{vQoff}, v{vRow}, 8, v{vA}
    v_lshl_add_u32 v{vKoff}, v{vRow}, 11, v{vA}
    v_add_u32 v{vKoff}, s{sT1}, v{vKoff}
    v_and_b32 v{vA}, 7, v{vRow}
    v_lshlrev_b32 v{vA}, 1, v{vA}
    v_xor_b32 v{vA}, v{vR}, v{vA}
    v_lshlrev_b32 v{vA}, 4, v{vA}
    v_lshl_add_u32 v{vVoff}, v{vRow}, 11, v{vA}
    v_add_u32 v{vVoff}, s{sT1}, v{vVoff}
    v_lshlrev_b32 v{vB_}, 2, v{vR}
    v_max_u32 v{vA}, 1, v1
    s_lshl_b32 s{sT0}, s{sIDX}, 10
    s_sub_u32 s{sT0}, s{sT0}, 8
    v_lshl_add_u32 v{vA}, v{vA}, 3, s{sT0}
    s_lshl_b32 s{sE0}, s{sIDX}, 3
    s_add_u32 s{sE0}, s{sE0}, s{sH}
    s_lshl_b32 s{sE0}, s{sE0}, 14
    s_waitcnt lgkmcnt(0)
    """)
    srd(sBT, sKA + 6, 16384)
    srd(sCLs, sKA + 8, 64)
    srd(sQ, sKA + 0, 2097152)
    if o.stamps:
        srd(sSTAMP, sKA + 14, 537395200)
    a(f"""
    s_cmp_eq_u32 s{sOWN}, 0
    s_cbranch_scc1 L_p_help
    buffer_load_dwordx2 {vr(vBT,2)}, v{vA}, s[{sBT}:{sBT+3}], 0 offen
    buffer_load_dword v{vCL}, v{vB_}, s[{sCLs}:{sCLs+3}], 0 offen
    """)
    def issue_q():
        for i in range(4):
            if i == 0:
                a(f"s_mov_b32 m0, s{sPB}\ns_nop 0")
            else:
                a(f"s_add_u32 m0, s{sPB}, {4096*i}\ns_add_u32 s{sE0}, s{sE0}, 4096")
            a(f"buffer_load_dwordx4 v{vQoff}, s[{sQ}:{sQ+3}], s{sE0} offen lds")
    def issue_kv():
        seq = [(vKoff, sK, sE0), (vKoff, sK, sE1), (vVoff, sV, sE0), (vVoff, sV, sE1)]
        for i, (vo, sd, so) in enumerate(seq):
            if i == 0:
                a(f"s_mov_b32 m0, s{sPB}\ns_nop 0")
            else:
                a(f"s_add_u32 m0, s{sPB}, {4096*i}\ns_nop 0")
            a(f"buffer_load_dwordx4 v{vo}, s[{sd}:{sd+3}], s{so} offen{nt} lds")
    issue_q()
    srd(sK, sKA + 2, KVB)
    srd(sV, sKA + 4, KVB)
    a(f"""
    s_mov_b32 s{sPL}, 1
    s_add_u32 s{sPB}, s{sPB}, {SLOT}
    s_waitcnt vmcnt(5)
    v_lshlrev_b32 v{vE0}, 15, v{vBT}
    v_lshlrev_b32 v{vE1}, 15, v{vBT+1}
    s_branch L_p_issue
L_p_help:
    buffer_load_dword v{vCL}, v{vB_}, s[{sCLs}:{sCLs+3}], 0 offen
    """)
    srd(sK, sKA + 2, KVB)
    srd(sV, sKA + 4, KVB)
    a(f"""
    s_waitcnt vmcnt(0)
L_p_build:
    """)
    def scan(v):
        for sh in (1, 2, 4, 8):
            a(f"s_nop 1\nv_add_u32_dpp v{v}, v{v}, v{v} row_shr:{sh} row_mask:0xf bank_mask:0xf bound_ctrl:0")
    a(f"""
    v_cmp_gt_i32 vcc, 1, v{vCL}
    v_mov_b32 v{vA}, 0x1000
    v_min_i32 v{vCLE}, v{vA}, v{vCL}
    v_mov_b32 v{vZero}, 0
    v_cndmask_b32 v{vCLE}, v{vCLE}, v{vA}, vcc
    v_cndmask_b32 v{vZQ}, 0, 1, vcc
    v_add_u32 v{vN}, 31, v{vCLE}
    v_lshrrev_b32 v{vN}, 5, v{vN}
    v_add_u32 v{vN1}, 15, v{vCLE}
    v_lshrrev_b32 v{vN1}, 5, v{vN1}
    v_mov_b32 v{vS}, v{vN}
    """)
    scan(vS)
    a(f"""
    s_nop 0
    v_readlane_b32 s{sCo}, v{vS}, 15
    s_add_u32 s{sCo}, s{sCo}, {16*o.delta + 31}
    s_lshr_b32 s{sCo}, s{sCo}, 5
    s_min_u32 s{sCo}, s{sCo}, 128
    v_subrev_u32 v{vRm}, s{sCo}, v{vN}
    v_max_i32 v{vRm}, 0, v{vRm}
    v_mov_b32 v{vPE}, v{vRm}
    """)
    scan(vPE)
    a(f"""
    v_sub_u32 v{vPS}, v{vPE}, v{vRm}
    v_readlane_b32 s{sCh}, v{vPE}, 15
    s_add_u32 s{sCh}, s{sCh}, 15
    s_lshr_b32 s{sCh}, s{sCh}, 4
    s_mov_b32 s{sX5}, 0
    s_cmp_eq_u32 s{sOWN}, 0
    s_cbranch_scc1 L_p_bh
    v_min_u32 v{vLen}, s{sCo}, v{vN}
    v_cmp_eq_u32 vcc, s{sIDX}, v{vR}
    v_mov_b32 v{vStart}, 0
    v_readlane_b32 s{sX0}, v{vPS}, s{sIDX}
    v_readlane_b32 s{sX1}, v{vPE}, s{sIDX}
    v_cndmask_b32 v{vLen}, 0, v{vLen}, vcc
    v_mul_u32_u24 v{vA}, s{sCh}, v{vR}
    v_add_u32 v{vB_}, s{sCh}, v{vA}
    v_cmp_gt_u32 s[{sMP}:{sMP+1}], s{sX1}, v{vA}
    v_cmp_lt_u32 s[{sMP+2}:{sMP+3}], s{sX0}, v{vB_}
    s_and_b32 s{sX5}, s{sMP}, s{sMP+2}
    s_and_b32 s{sX5}, s{sX5}, 0xffff
    s_cmp_gt_u32 s{sX1}, s{sX0}
    s_cselect_b32 s{sX5}, s{sX5}, 0
    s_branch L_p_bj
L_p_bh:
    s_mul_i32 s{sP0}, s{sIDX}, s{sCh}
    s_add_u32 s{sP1}, s{sP0}, s{sCh}
    v_max_u32 v{vA}, s{sP0}, v{vPS}
    v_min_u32 v{vB_}, s{sP1}, v{vPE}
    v_sub_u32 v{vLen}, v{vB_}, v{vA}
    v_max_i32 v{vLen}, 0, v{vLen}
    v_sub_u32 v{vStart}, v{vA}, v{vPS}
    v_add_u32 v{vStart}, s{sCo}, v{vStart}
L_p_bj:
    v_sub_u32 v{vLen1}, v{vN1}, v{vStart}
    v_min_i32 v{vLen1}, v{vLen}, v{vLen1}
    v_cmp_lt_i32 vcc, 0, v{vLen}
    v_add_u32 v{vA}, v{vStart}, v{vLen}
    v_lshlrev_b32 v{vA}, 5, v{vA}
    v_cndmask_b32 v{vFl}, 0, 1, vcc
    s_and_b32 s{sMask}, vcc_lo, 0xffff
    v_add_u32 v{vFl}, v{vFl}, v{vLen}
    v_mov_b32 v{vF}, v{vFl}
    v_sub_u32 v{vRecP+2}, v{vCLE}, v{vA}
    v_add_u32 v{vRecP+2}, 32, v{vRecP+2}
    """)
    scan(vF)
    a(f"""
    v_mov_b32 v{vRecP}, v{vR}
    v_readlane_b32 s{sFt}, v{vF}, 15
    v_sub_u32 v{vF}, v{vF}, v{vFl}
    v_mov_b32 v{vRecP+1}, v{vLen}
    v_mov_b32 v{vRecP+3}, v{vZQ}
    s_max_u32 s{sFt}, s{sFt}, 1
    """)
    for t in range(3):
        a(f"""
        v_mov_b32 v{vAdd0+t}, {hex(OOB)}
        v_mov_b32 v{vAdd1+t}, {hex(OOB)}
        v_mov_b32 v{vBoff+t}, 0x10000
        v_add_u32 v{vFm1+t}, {64*t-1}, v1
        """)
    a(f"""
    s_mov_b32 s{sX4}, s{sMask}
    s_cmp_eq_u32 s{sX4}, 0
    s_cbranch_scc1 L_p_tdone
L_p_tloop:
    s_ff1_i32_b32 s{sT0}, s{sX4}
    s_bitset0_b32 s{sX4}, s{sT0}
    v_readlane_b32 s{sX0}, v{vF}, s{sT0}
    v_readlane_b32 s{sX1}, v{vLen}, s{sT0}
    v_readlane_b32 s{sX2}, v{vLen1}, s{sT0}
    v_readlane_b32 s{sX3}, v{vStart}, s{sT0}
    s_lshl_b32 s{sT1}, s{sT0}, 3
    s_add_u32 s{sT1}, s{sT1}, s{sH}
    s_lshl_b32 s{sT1}, s{sT1}, 14
    s_or_b32 s{sT1}, s{sT1}, 1
    v_mov_b32 v{vQv}, s{sT1}
    s_lshl_b32 s{sT0}, s{sT0}, 10
    s_lshl_b32 s{sX3}, s{sX3}, 3
    s_add_u32 s{sT0}, s{sT0}, s{sX3}
    """)
    for t in range(3):
        a(f"v_subrev_u32 v{vRel+t}, s{sX0}, v{vFm1+t}")
    for t in range(3):
        a(f"""
        v_cmp_gt_u32 s[{sMP+6*t}:{sMP+6*t+1}], s{sX1}, v{vRel+t}
        v_cmp_gt_u32 s[{sMP+6*t+2}:{sMP+6*t+3}], s{sX2}, v{vRel+t}
        v_cmp_eq_u32 s[{sMP+6*t+4}:{sMP+6*t+5}], -1, v{vRel+t}
        v_lshl_add_u32 v{vTmp+t}, v{vRel+t}, 3, s{sT0}
        """)
    for t in range(3):
        a(f"""
        v_cndmask_b32 v{vBoff+t}, v{vBoff+t}, v{vTmp+t}, s[{sMP+6*t}:{sMP+6*t+1}]
        v_cndmask_b32 v{vAdd0+t}, v{vAdd0+t}, v{vZero}, s[{sMP+6*t}:{sMP+6*t+1}]
        v_cndmask_b32 v{vAdd1+t}, v{vAdd1+t}, v{vZero}, s[{sMP+6*t+2}:{sMP+6*t+3}]
        v_cndmask_b32 v{vAdd0+t}, v{vAdd0+t}, v{vQv}, s[{sMP+6*t+4}:{sMP+6*t+5}]
        """)
    a(f"""
    s_cmp_lg_u32 s{sX4}, 0
    s_cbranch_scc1 L_p_tloop
L_p_tdone:
    s_cmp_eq_u32 s{sOWN}, 0
    s_cbranch_scc0 L_p_nobt0
    buffer_load_dwordx2 {vr(vBT,2)}, v{vBoff}, s[{sBT}:{sBT+3}], 0 offen
L_p_nobt0:
    buffer_load_dwordx2 {vr(vBT+2,2)}, v{vBoff+1}, s[{sBT}:{sBT+3}], 0 offen
    buffer_load_dwordx2 {vr(vBT+4,2)}, v{vBoff+2}, s[{sBT}:{sBT+3}], 0 offen
    """)
    a(f"""
    v_mbcnt_lo_u32_b32 v{vA}, s{sMask}, 0
    v_lshlrev_b32 v{vA}, 4, v{vA}
    v_add_u32 v{vA}, {LIST+16}, v{vA}
    s_bcnt1_i32_b32 s{sT0}, s{sMask}
    v_mov_b32 v{vTmp}, s{sT0}
    v_mov_b32 v{vTmp+1}, s{sX5}
    v_mov_b32 v{vB_}, {LIST}
    ds_write_b64 v{vB_}, {vr(vTmp,2)}
    s_cmp_eq_u32 s{sMask}, 0
    s_cbranch_scc1 L_p_norec
    s_mov_b32 exec_lo, s{sMask}
    s_mov_b32 exec_hi, 0
    ds_write_b128 v{vA}, {vr(vRecP,4)}
    s_mov_b64 exec, -1
L_p_norec:
    s_cmp_eq_u32 s{sOWN}, 0
    s_cbranch_scc0 L_p_fix
    s_waitcnt vmcnt(2)
    s_mov_b32 s{sPL}, 0
L_p_fix:
    v_lshl_add_u32 v{vE0}, v{vBT}, 15, v{vAdd0}
    v_lshl_add_u32 v{vE1}, v{vBT+1}, 15, v{vAdd1}
    s_cbranch_scc0 L_p_main0
L_p_issue:
    s_nop 0
    v_readlane_b32 s{sE0}, v{vE0}, s{sPL}
    v_readlane_b32 s{sE1}, v{vE1}, s{sPL}
    s_nop 3
    s_bitcmp1_b32 s{sE0}, 0
    s_cbranch_scc1 L_p_iq
    """)
    issue_kv()
    a(f"""
L_p_inext:
    s_add_u32 s{sPB}, s{sPB}, {SLOT}
    s_add_u32 s{sPL}, s{sPL}, 1
    s_cmp_lt_u32 s{sPL}, {D}
    s_cbranch_scc1 L_p_issue
    s_cmp_eq_u32 s{sOWN}, 0
    s_cbranch_scc1 L_p_main0
    s_waitcnt vmcnt({4*D})
    s_branch L_p_build
L_p_iq:
    s_sub_u32 s{sE0}, s{sE0}, 1
    """)
    issue_q()
    a(f"""
    s_branch L_p_inext
L_p_main0:
    """)
    stamp(1, vSTp)
    a(f"""
    s_mov_b32 s{sFi}, 0
    s_waitcnt lgkmcnt(0)
L_p_main:
    v_readlane_b32 s{sE0}, v{vE0}, s{sPL}
    v_readlane_b32 s{sE1}, v{vE1}, s{sPL}
    s_add_u32 s{sPL}, s{sPL}, 1
    s_add_u32 s{sFi}, s{sFi}, 1
    s_bitcmp1_b32 s{sE0}, 0
    s_waitcnt vmcnt({4*(D-1)})
    s_barrier
    s_cbranch_scc1 L_p_mq
    """)
    issue_kv()
    a(f"""
L_p_mnext:
    s_add_u32 s{sPB}, s{sPB}, {SLOT}
    s_cmp_ge_u32 s{sPB}, {NS*SLOT}
    s_cselect_b32 s{sT0}, {NS*SLOT}, 0
    s_sub_u32 s{sPB}, s{sPB}, s{sT0}
    s_cmp_eq_u32 s{sPL}, 64
    s_cbranch_scc1 L_p_rot
L_p_mchk:
    s_cmp_lt_u32 s{sFi}, s{sFt}
    s_cbranch_scc1 L_p_main
    """)
    stamp(3, vSTp)
    a(f"""
    s_endpgm
L_p_mq:
    s_sub_u32 s{sE0}, s{sE0}, 1
    """)
    issue_q()
    a(f"""
    s_branch L_p_mnext
L_p_rot:
    v_lshl_add_u32 v{vE0}, v{vBT+2}, 15, v{vAdd0+1}
    v_lshl_add_u32 v{vE1}, v{vBT+3}, 15, v{vAdd1+1}
    v_mov_b32 v{vBT+2}, v{vBT+4}
    v_mov_b32 v{vBT+3}, v{vBT+5}
    v_mov_b32 v{vAdd0+1}, v{vAdd0+2}
    v_mov_b32 v{vAdd1+1}, v{vAdd1+2}
    s_mov_b32 s{sPL}, 0
    s_branch L_p_mchk
L_end:
    s_endpgm
    """)
    a(f"""
.section .rodata,"a"
.p2align 6
.amdhsa_kernel {KN}_kernel
  .amdhsa_next_free_vgpr 216
  .amdhsa_next_free_sgpr 102
  .amdhsa_accum_offset 216
  .amdhsa_group_segment_fixed_size 0
  .amdhsa_kernarg_size 64
  .amdhsa_user_sgpr_count 2
  .amdhsa_user_sgpr_kernarg_segment_ptr 1
  .amdhsa_system_sgpr_workgroup_id_x 1
.end_amdhsa_kernel
""")
    return a.text(), LDS

if __name__ == "__main__":
    p = argparse.ArgumentParser()
    p.add_argument("-o", default="k.s")
    p.add_argument("--ns", type=int, default=9)
    p.add_argument("--delta", type=int, default=6)
    p.add_argument("--thr", type=float, default=6.0)
    p.add_argument("--kp", type=int, default=12)
    p.add_argument("--kfast", type=int, default=6)
    p.add_argument("--nt", type=int, default=1)
    p.add_argument("--nocompute", type=int, default=0)
    p.add_argument("--stamps", type=int, default=0)
    o = p.parse_args()
    t, lds = gen(o)
    open(o.o, "w").write(t)
    print("lds", lds)
```

```python
import argparse, struct, math

KN = "standalone__paged_block_table_kv_pagedattention__sampling"

def f2u(f):
    return struct.unpack("<I", struct.pack("<f", f))[0]

class Asm:
    def __init__(self):
        self.lines = []
    def __call__(self, s):
        for l in s.strip("\n").split("\n"):
            l = l.strip()
            if not l: continue
            if l.endswith(":") or l.startswith("."):
                self.lines.append(l)
            else:
                self.lines.append("    " + l)
    def text(self):
        return "\n".join(self.lines) + "\n"

def vr(b, n=1):
    return f"v{b}" if n == 1 else f"v[{b}:{b+n-1}]"

def gen(o):
    NS = o.ns; LAG = 4; SLOT = 16384
    assert NS >= LAG + 1
    LDS = NS * SLOT
    KVB = 4100 * 32768
    OOB = KVB
    PSL = 4736
    WSB = 128 * 4 * PSL
    WMIN, WMAX = 2, 13
    nt = " nt" if o.nt else ""
    a = Asm()
    hdr = open("cdna_kernels/%s.s.ref" % KN).read().split("\n")
    for l in hdr:
        if l.startswith("; @launch"): break
        a.lines.append(l)
    a.lines.append(f"; @launch grid=(256,1,1) block=(512,1,1) lds={LDS}")
    a(f"""
.amdgcn_target "amdgcn-amd-amdhsa--gfx950"
.text
.globl {KN}_kernel
.p2align 8
.type {KN}_kernel,@function
{KN}_kernel:
""")
    sH, sB, sW, sOWN = 24, 25, 26, 27
    sT0, sT1, sT2, sT3 = 28, 29, 30, 31
    sKA = 36
    sCL, sCLE, sN, sA, sZQ, sS0, sLEN = 32, 33, 34, 35, 20, 21, 22
    sSTAMP = 92
    def srd(base, ptr, nbytes):
        a(f"""
        s_mov_b32 s{base}, s{ptr}
        s_and_b32 s{base+1}, s{ptr+1}, 0xffff
        s_mov_b32 s{base+2}, {hex(nbytes)}
        s_mov_b32 s{base+3}, 0x20000
        """)
    def stamp(k, vtmp, src=None):
        if not o.stamps: return
        if src is None:
            a("s_memrealtime s[96:97]\ns_waitcnt lgkmcnt(0)"); src = 96
        a(f"""
        v_mov_b32 v{vtmp}, s{src}
        v_mov_b32 v{vtmp+1}, s{src+1}
        s_lshl_b32 s98, s2, 3
        s_add_u32 s98, s98, s{sW}
        s_lshl_b32 s98, s98, 6
        s_add_u32 s98, s98, {400*1024*1024 + 8*k}
        v_mov_b32 v{vtmp+2}, 0
        s_mov_b64 exec, 1
        buffer_store_dwordx2 v[{vtmp}:{vtmp+1}], v{vtmp+2}, s[{sSTAMP}:{sSTAMP+3}], s98 offen
        s_mov_b64 exec, -1
        """)
    def schedule():
        a(f"""
        s_min_i32 s{sCLE}, s{sCL}, 0x1000
        s_cmp_lt_i32 s{sCL}, 1
        s_cselect_b32 s{sZQ}, 1, 0
        s_cselect_b32 s{sCLE}, 0x1000, s{sCLE}
        s_add_u32 s{sN}, s{sCLE}, 31
        s_lshr_b32 s{sN}, s{sN}, 5
        s_add_u32 s{sA}, s{sN}, {o.delta + 2}
        s_lshr_b32 s{sA}, s{sA}, 2
        s_lshl_b32 s{sA}, s{sA}, 1
        s_min_u32 s{sA}, s{sA}, s{sN}
        s_sub_u32 s{sLEN}, s{sN}, s{sA}
        s_cmp_eq_u32 s{sOWN}, 0
        s_cselect_b32 s{sS0}, s{sA}, 0
        s_cselect_b32 s{sLEN}, s{sLEN}, s{sA}
        """)
    a(f"""
    s_cmp_ge_u32 s2, 256
    s_cbranch_scc1 L_end
    s_load_dwordx16 s[{sKA}:{sKA+15}], s[0:1], 0
    """)
    if o.stamps:
        a("s_memrealtime s[90:91]")
    a(f"""
    v_lshrrev_b32 v1, 6, v0
    s_and_b32 s{sH}, s2, 7
    v_readfirstlane_b32 s{sW}, v1
    s_bfe_u32 s{sB}, s2, 0x40003
    s_cmp_lt_u32 s2, 128
    s_cselect_b32 s{sOWN}, 1, 0
    s_lshl_b32 s{sT3}, s{sB}, 2
    v_and_b32 v1, 63, v0
    s_cmp_ge_u32 s{sW}, 4
    s_cbranch_scc1 L_producer
    """)
    vLane, vG4, vTA, vTB = 1, 2, 3, 199
    vKa = 4; vVa = 8; Kf = 16; Vf = 48; Qf = 80; S = 96; P = 104; O = 108; L = 140; ONES = 144
    MC = 148; T0 = 149; X = 150; T1 = 158; T2 = 159; PB = 160; vPoll = 196; vOutOff = 197; vWsOff = 198
    vDbg = 200; vWsOff2 = 201; vZ = 202; vPoll2 = 203; vNinf = 208; vST = 212
    sWS, sOUT, sDBG = 4, 8, 12
    sC, sTH, sREM, sEVT, sSLOT, sDELTA = 16, 17, 18, 19, 23, 52
    sNV, sBIT, sST, sPOLL, sSL, sSO, sHI, sFO, sV0 = 53, 54, 55, 72, 73, 74, 75, 76, 77
    sM0 = 56
    cscale = math.log2(math.e) / math.sqrt(128.0)
    a(f"""
    v_lshrrev_b32 v{vTA}, 4, v{vLane}
    v_lshlrev_b32 v{vG4}, 2, v{vTA}
    v_and_b32 v{vTB}, 15, v{vLane}
    v_xor_b32 v{vKa}, v{vTA}, v{vTB}
    v_lshlrev_b32 v{vKa}, 4, v{vKa}
    v_lshl_add_u32 v{vKa}, v{vTB}, 8, v{vKa}
    v_xor_b32 v{vKa+1}, 64, v{vKa}
    v_xor_b32 v{vKa+2}, 0x80, v{vKa}
    v_xor_b32 v{vKa+3}, 0xc0, v{vKa}
    v_lshlrev_b32 v{vOutOff}, 8, v{vTB}
    v_lshl_add_u32 v{vOutOff}, v{vTA}, 3, v{vOutOff}
    v_lshlrev_b32 v{vWsOff}, 4, v{vLane}
    v_lshlrev_b32 v{vWsOff2}, 3, v{vLane}
    v_lshrrev_b32 v{vTA}, 2, v{vLane}
    v_and_b32 v{vTB}, 7, v{vTA}
    v_lshlrev_b32 v{vTB}, 5, v{vTB}
    v_lshl_add_u32 v{vVa}, v{vTA}, 8, v{vTB}
    v_and_b32 v{vTB}, 3, v{vLane}
    v_lshl_add_u32 v{vVa}, v{vTB}, 3, v{vVa}
    v_add_u32 v{vVa}, 0x2000, v{vVa}
    s_waitcnt lgkmcnt(0)
    s_load_dword s{sCL}, s[{sKA+8}:{sKA+9}], s{sT3}
    """)
    for n in range(1, 8):
        a(f"v_xor_b32 v{vVa+n}, {n*32}, v{vVa}")
    a(f"""
    s_lshl_b32 s{sT0}, s{sH}, 4
    s_add_u32 s{sT0}, s{sT0}, s{sB}
    s_lshr_b32 s{sT1}, s{sT0}, 1
    s_lshl_b32 s{sT1}, s{sT1}, 2
    v_mov_b32 v{vDbg}, s{sT1}
    s_lshl_b32 s{sSO}, s{sT0}, 2
    s_add_u32 s{sSO}, s{sSO}, s{sW}
    s_mul_i32 s{sSO}, s{sSO}, {PSL}
    s_and_b32 s{sT1}, s{sB}, 1
    s_lshl_b32 s{sBIT}, 1, s{sT1}
    v_mov_b32 v{vNinf}, 0xff800000
    s_mov_b32 s{sC}, {hex(f2u(cscale))}
    s_mov_b32 s{sTH}, {hex(f2u(o.thr))}
    s_mov_b32 s{sSLOT}, 1
    s_mov_b32 s{sSL}, {SLOT}
    s_mov_b32 s{sHI}, 0xffff0000
    s_lshl_b32 s{sT0}, s{sW}, 12
    """)
    for s in range(4):
        a(f"v_add_u32 v{X+s}, s{sT0}, v{vKa+s}")
    for i in range(12):
        a(f"v_add_u32 v{vKa+i}, {SLOT}, v{vKa+i}")
    for i in range(4):
        a(f"v_mov_b32 v{ONES+i}, 0x3f803f80")
    for i in range(36):
        a(f"v_mov_b32 v{O+i}, 0")
    for i in range(32):
        a(f"v_mov_b32 v{Vf+i}, 0")
    for i in range(8):
        a(f"v_mov_b32 v{S+i}, v{vNinf}")
    a(f"v_mov_b32 v{MC}, {hex(f2u(-3.0e38))}")
    srd(sWS, sKA + 14, WSB)
    a(f"""
    s_add_u32 s{sFO}, s{sSO}, 4608
    v_mov_b32 v{vZ}, 0
    buffer_load_dword v{vPoll}, v{vZ}, s[{sWS}:{sWS+3}], s{sFO} offen sc1
    """)
    srd(sOUT, sKA + 10, 2097152)
    srd(sDBG, sKA + 12, 256)
    if o.stamps:
        srd(sSTAMP, sKA + 14, 537395200)
        stamp(0, vST, 90)
    a("s_waitcnt lgkmcnt(0)")
    schedule()
    stamp(1, vST)
    a(f"""
    s_cmp_eq_u32 s{sLEN}, 0
    s_cbranch_scc1 L_end
    s_mov_b32 s{sREM}, s{sLEN}
    s_add_u32 s{sT0}, s{sS0}, s{sLEN}
    s_lshl_b32 s{sT0}, s{sT0}, 5
    s_sub_u32 s{sNV}, s{sCLE}, s{sT0}
    s_add_u32 s{sNV}, s{sNV}, 32
    s_cmp_lt_u32 s{sA}, s{sN}
    s_cselect_b32 s{sST}, s{sOWN}, 0
    {"s_mov_b32 s%d, 0" % sST if o.noserv else ""}
    s_min_u32 s{sEVT}, s{sREM}, {o.kp}
    s_cmp_eq_u32 s{sST}, 0
    s_cselect_b32 s{sEVT}, 0, s{sEVT}
    s_barrier
    """)
    stamp(2, vST)
    for s in range(4):
        a(f"ds_read_b128 {vr(Qf+4*s,4)}, v{X+s}")
    a(f"""
    s_cmp_eq_u32 s{sZQ}, 0
    s_waitcnt vmcnt(0) lgkmcnt(0)
    v_readfirstlane_b32 s{sV0}, v{vPoll}
    v_mov_b32 v{vPoll2}, 0
    s_cbranch_scc1 L_kv
    """)
    for i in range(16):
        a(f"v_mov_b32 v{Qf+i}, 0")
    a(f"""
L_kv:
    s_cmp_eq_u32 s{sREM}, s{sEVT}
    s_cbranch_scc1 L_service
L_kvbar:
    s_barrier
L_body:
    """)
    def adv_slot_scalar():
        a(f"""
        s_add_u32 s{sSLOT}, s{sSLOT}, 1
        s_cmp_eq_u32 s{sSLOT}, {NS}
        s_cselect_b32 s{sSLOT}, 0, s{sSLOT}
        s_cselect_b32 s{sDELTA}, {hex((-(NS-1)*SLOT) & 0xffffffff)}, s{sSL}
        """)
    if not o.nocompute:
        for t in range(2):
            for s in range(4):
                off = f" offset:{4096*t}" if t else ""
                a(f"ds_read_b128 {vr(Kf+(t*4+s)*4,4)}, v{vKa+s}{off}")
        a(f"""
        v_max3_f32 v{T0}, v{S}, v{S+1}, v{S+2}
        v_max3_f32 v{T1}, v{S+3}, v{S+4}, v{S+5}
        v_max3_f32 v{T0}, v{T0}, v{S+6}, v{S+7}
        v_max_f32 v{T0}, v{T0}, v{T1}
        v_fma_f32 v{T1}, v{T0}, s{sC}, -v{MC}
        v_cmp_lt_f32 vcc, s{sTH}, v{T1}
        s_cbranch_vccnz L_rare
L_back:
        """)
        for j in range(8):
            a(f"v_fma_f32 v{X+j}, v{S+j}, s{sC}, -v{MC}")
        for j in range(8):
            a(f"v_exp_f32 v{X+j}, v{X+j}")
        a("s_nop 0")
        for j in range(4):
            a(f"v_cvt_pk_bf16_f32 v{P+j}, v{X+2*j}, v{X+2*j+1}")
        a(f"s_waitcnt lgkmcnt(0)")
        a(f"s_cmp_eq_u32 s{sREM}, 0")
        a(f"v_mfma_f32_16x16x32_bf16 {vr(L,4)}, {vr(ONES,4)}, {vr(P,4)}, {vr(L,4)}")
        for n in range(8):
            a(f"v_mfma_f32_16x16x32_bf16 {vr(O+4*n,4)}, {vr(Vf+4*n,4)}, {vr(P,4)}, {vr(O+4*n,4)}")
            a(f"ds_read_b64_tr_b16 {vr(Vf+4*n,2)}, v{vVa+n}")
            a(f"ds_read_b64_tr_b16 {vr(Vf+4*n+2,2)}, v{vVa+n} offset:4096")
        a(f"s_cbranch_scc1 L_fin")
        adv_slot_scalar()
        k = 0
        for s in range(4):
            for t in range(2):
                c = "0" if s == 0 else vr(S+4*t,4)
                a(f"v_mfma_f32_16x16x32_bf16 {vr(S+4*t,4)}, {vr(Kf+(t*4+s)*4,4)}, {vr(Qf+4*s,4)}, {c}")
                for _ in range(2):
                    if k < 12:
                        a(f"v_add_u32 v{vKa+k}, s{sDELTA}, v{vKa+k}"); k += 1
    else:
        a(f"""
L_back:
        s_cmp_eq_u32 s{sREM}, 0
        s_cbranch_scc1 L_fin
        """)
    a(f"""
    s_sub_u32 s{sREM}, s{sREM}, 1
    s_waitcnt lgkmcnt(0)
    s_cmp_lg_u32 s{sREM}, 0
    s_cbranch_scc1 L_kv
    s_cmp_ge_i32 s{sNV}, 32
    s_nop 7
    s_cbranch_scc1 L_body
    """)
    for t in range(2):
        for r in range(4):
            j = t*4 + r
            a(f"s_sub_u32 s{sT0}, s{sNV}, {16*t+r}")
            a(f"v_cmp_gt_i32 s[{sM0+2*j}:{sM0+2*j+1}], s{sT0}, v{vG4}")
    a("s_nop 1")
    for j in range(8):
        a(f"v_cndmask_b32 v{S+j}, v{vNinf}, v{S+j}, s[{sM0+2*j}:{sM0+2*j+1}]")
    a("s_branch L_body")
    a(f"""
L_rare:
    v_mov_b32 v{T1}, v{T0}
    s_nop 1
    v_permlane32_swap_b32 v{T0}, v{T1}
    s_nop 1
    v_max_f32 v{T0}, v{T0}, v{T1}
    v_mov_b32 v{T1}, v{T0}
    s_nop 1
    v_permlane16_swap_b32 v{T0}, v{T1}
    s_nop 1
    v_max_f32 v{T0}, v{T0}, v{T1}
    v_mul_f32 v{T0}, s{sC}, v{T0}
    v_max_f32 v{T0}, v{T0}, v{MC}
    v_sub_f32 v{T1}, v{MC}, v{T0}
    v_exp_f32 v{T1}, v{T1}
    v_mov_b32 v{MC}, v{T0}
    s_nop 0
    """)
    for i in range(33):
        a(f"v_mul_f32 v{O+i}, v{T1}, v{O+i}")
    a("s_branch L_back")
    a(f"""
L_service:
    s_mov_b32 s{sT3}, 0
L_service2:
    s_waitcnt vmcnt(0)
    s_cmp_eq_u32 s{sST}, 2
    s_cbranch_scc1 L_sv_fold
    v_readfirstlane_b32 s{sPOLL}, v{vPoll}
    v_readfirstlane_b32 s{sT0}, v{vPoll2}
    s_and_b32 s{sT0}, s{sT0}, s{sBIT}
    s_cbranch_scc1 L_sv_load
    s_cmp_eq_u32 s{sPOLL}, s{sV0}
    s_cbranch_scc1 L_sv_poll
L_sv_load:
    """)
    for n in range(4):
        a(f"buffer_load_dwordx4 {vr(PB+4*n,4)}, v{vWsOff}, s[{sWS}:{sWS+3}], s{sSO} offen offset:{n*1024} sc1")
    a(f"""
    s_add_u32 s{sT0}, s{sSO}, 4096
    buffer_load_dwordx2 {vr(PB+16,2)}, v{vWsOff2}, s[{sWS}:{sWS+3}], s{sT0} offen sc1
    s_mov_b32 s{sST}, 2
    s_branch L_sv_ret
L_sv_poll:
    buffer_load_dword v{vPoll}, v{vZ}, s[{sWS}:{sWS+3}], s{sFO} offen sc1
    s_and_b32 s{sT0}, s{sT3}, 15
    s_cmp_lg_u32 s{sT0}, 15
    s_cbranch_scc1 L_sv_ret
    buffer_load_dword v{vPoll2}, v{vDbg}, s[{sDBG}:{sDBG+3}], 0 offen sc1
    s_branch L_sv_ret
L_sv_fold:
    v_max_f32 v{T0}, v{MC}, v{PB+16}
    v_sub_f32 v{T1}, v{MC}, v{T0}
    v_sub_f32 v{T2}, v{PB+16}, v{T0}
    v_exp_f32 v{T1}, v{T1}
    v_exp_f32 v{T2}, v{T2}
    v_mov_b32 v{MC}, v{T0}
    s_mov_b32 s{sST}, 0
    v_mul_f32 v{T2}, v{T2}, v{PB+17}
    v_fma_f32 v{L}, v{L}, v{T1}, v{T2}
    """)
    for i in range(16):
        a(f"""
        v_lshlrev_b32 v{X}, 16, v{PB+i}
        v_and_b32 v{X+1}, s{sHI}, v{PB+i}
        v_mul_f32 v{O+2*i}, v{T1}, v{O+2*i}
        v_mul_f32 v{O+2*i+1}, v{T1}, v{O+2*i+1}
        v_fmac_f32 v{O+2*i}, v{T2}, v{X}
        v_fmac_f32 v{O+2*i+1}, v{T2}, v{X+1}
        """)
    a(f"""
L_sv_ret:
    s_cmp_gt_u32 s{sREM}, {o.kfast}
    s_cselect_b32 s{sT0}, {o.kstep}, {o.kstep2}
    s_sub_i32 s{sEVT}, s{sREM}, s{sT0}
    s_max_i32 s{sEVT}, s{sEVT}, 0
    s_cmp_eq_u32 s{sST}, 0
    s_cselect_b32 s{sEVT}, 0, s{sEVT}
    s_cmp_eq_u32 s{sT3}, 0
    s_cbranch_scc1 L_kvbar
L_own_wait:
    s_add_u32 s{sT3}, s{sT3}, 1
    s_cmp_gt_u32 s{sT3}, 0x8000
    s_cbranch_scc1 L_out
    s_cmp_lg_u32 s{sST}, 0
    s_cbranch_scc1 L_service2
    s_branch L_out
L_fin:
    s_mov_b32 s{sT3}, 1
    s_cmp_lg_u32 s{sST}, 0
    s_nop 6
    """)
    if o.stamps:
        stamp(3, vST)
        a(f"s_cmp_lg_u32 s{sST}, 0")
    a(f"""
    s_cbranch_scc1 L_service2
L_out:
    v_rcp_f32 v{T0}, v{L}
    s_lshl_b32 s{sT0}, s{sB}, 3
    s_add_u32 s{sT0}, s{sT0}, s{sH}
    s_lshl_b32 s{sT0}, s{sT0}, 2
    s_add_u32 s{sT0}, s{sT0}, s{sW}
    s_lshl_b32 s{sT0}, s{sT0}, 12
    s_cmp_eq_u32 s{sOWN}, 0
    """)
    for n in range(8):
        for r in range(4):
            a(f"v_mul_f32 v{O+4*n+r}, v{T0}, v{O+4*n+r}")
        a(f"v_cvt_pk_bf16_f32 v{PB+2*n}, v{O+4*n}, v{O+4*n+1}")
        a(f"v_cvt_pk_bf16_f32 v{PB+2*n+1}, v{O+4*n+2}, v{O+4*n+3}")
    a("s_cbranch_scc1 L_publish")
    for n in range(8):
        a(f"buffer_store_dwordx2 {vr(PB+2*n,2)}, v{vOutOff}, s[{sOUT}:{sOUT+3}], s{sT0} offen offset:{32*n} {o.outflags}")
    if o.stamps:
        a("s_waitcnt vmcnt(0)")
        stamp(4, vST)
    a(f"""
    s_endpgm
L_publish:
    v_mov_b32 v{PB+16}, v{MC}
    v_mov_b32 v{PB+17}, v{L}
    s_add_u32 s{sT0}, s{sSO}, 4096
    v_mov_b32 v{T0}, s{sBIT}
    """)
    if not o.nopub:
        for n in range(4):
            a(f"buffer_store_dwordx4 {vr(PB+4*n,4)}, v{vWsOff}, s[{sWS}:{sWS+3}], s{sSO} offen offset:{n*1024} {o.pubflags}")
        a(f"buffer_store_dwordx2 {vr(PB+16,2)}, v{vWsOff2}, s[{sWS}:{sWS+3}], s{sT0} offen {o.pubflags}")
    a(f"""
    s_add_u32 s{sV0}, s{sV0}, 1
    v_mov_b32 v{T1}, s{sV0}
    s_waitcnt vmcnt(0)
    s_mov_b64 exec, 1
    buffer_store_dword v{T1}, v{vZ}, s[{sWS}:{sWS+3}], s{sFO} offen sc1
    s_mov_b64 exec, -1
    """)
    stamp(4, vST)
    a(f"""
    s_barrier
    s_cmp_lg_u32 s{sW}, 0
    s_cbranch_scc1 L_end
    s_mov_b64 exec, 1
    buffer_atomic_add v{T0}, v{vDbg}, s[{sDBG}:{sDBG+3}], 0 offen sc1
    s_endpgm
    """)
    vG, vR, vRow, vKoff, vVoff, vQoff, vA, vB_ = 2, 3, 4, 5, 6, 7, 9, 10
    vE = 12
    vOOB = 16; vI = 17; vSTp = 20
    sK, sV, sQ, sBT = 4, 8, 12, 16
    sCLA = 52
    sPB, sE0, sE1, sS, sSE, sCNT, sTOT, sWN, sOOB, sLN, sBOOST, sW2 = 68, 69, 70, 71, 72, 73, 74, 75, 76, 77, 78, 79
    sMP = 80
    a(f"""
L_producer:
    v_lshrrev_b32 v{vG}, 4, v1
    v_and_b32 v{vR}, 15, v1
    s_sub_u32 s{sT0}, s{sW}, 4
    s_lshl_b32 s{sPB}, s{sT0}, 10
    s_lshl_b32 s{sT0}, s{sT0}, 2
    s_lshl_b32 s{sT1}, s{sH}, 8
    v_add_u32 v{vRow}, s{sT0}, v{vG}
    v_xor_b32 v{vA}, v{vR}, v{vRow}
    v_lshlrev_b32 v{vA}, 4, v{vA}
    v_lshl_add_u32 v{vQoff}, v{vRow}, 8, v{vA}
    v_lshl_add_u32 v{vKoff}, v{vRow}, 11, v{vA}
    v_add_u32 v{vKoff}, s{sT1}, v{vKoff}
    v_lshlrev_b32 v{vB_}, 4, v1
    s_lshl_b32 s{sT2}, s{sB}, 10
    s_lshl_b32 s{sE0}, s{sB}, 3
    s_add_u32 s{sE0}, s{sE0}, s{sH}
    s_lshl_b32 s{sE0}, s{sE0}, 14
    s_mov_b32 m0, s{sPB}
    s_waitcnt lgkmcnt(0)
    """)
    srd(sBT, sKA + 6, 16384)
    a(f"""
    s_load_dword s{sCL}, s[{sKA+8}:{sKA+9}], s{sT3}
    s_load_dwordx16 s[{sCLA}:{sCLA+15}], s[{sKA+8}:{sKA+9}], 0
    buffer_load_dwordx4 {vr(vE,4)}, v{vB_}, s[{sBT}:{sBT+3}], s{sT2} offen
    """)
    srd(sQ, sKA + 0, 2097152)
    for i in range(4):
        if i:
            a(f"s_add_u32 m0, s{sPB}, {4096*i}\ns_add_u32 s{sE0}, s{sE0}, 4096")
        a(f"buffer_load_dwordx4 v{vQoff}, s[{sQ}:{sQ+3}], s{sE0} offen lds")
    srd(sK, sKA + 2, KVB)
    srd(sV, sKA + 4, KVB)
    if o.stamps:
        srd(sSTAMP, sKA + 14, 537395200)
    a(f"""
    v_and_b32 v{vA}, 7, v{vRow}
    v_lshlrev_b32 v{vA}, 1, v{vA}
    v_xor_b32 v{vA}, v{vR}, v{vA}
    v_lshlrev_b32 v{vA}, 4, v{vA}
    v_lshl_add_u32 v{vVoff}, v{vRow}, 11, v{vA}
    v_add_u32 v{vVoff}, s{sT1}, v{vVoff}
    v_mov_b32 v{vOOB}, {hex(OOB)}
    v_lshlrev_b32 v{vI}, 2, v1
    s_mov_b32 s{sOOB}, {hex(OOB)}
    s_add_u32 s{sPB}, s{sPB}, {SLOT}
    s_waitcnt lgkmcnt(0)
    """)
    schedule()
    a(f"""
    s_cmp_eq_u32 s{sLEN}, 0
    s_cbranch_scc1 L_end
    s_mov_b32 s{sS}, s{sS0}
    s_add_u32 s{sSE}, s{sS0}, s{sLEN}
    s_add_u32 s{sT0}, s{sCLE}, 15
    s_lshr_b32 s{sT0}, s{sT0}, 4
    s_sub_u32 s{sT1}, s{sT0}, 1
    s_sub_u32 s{sT2}, s{sT0}, 3
    v_cmp_gt_i32 s[{sMP}:{sMP+1}], s{sT1}, v{vI}
    v_cmp_gt_i32 s[{sMP+2}:{sMP+3}], s{sT2}, v{vI}
    s_mov_b32 s{sTOT}, 0
    """)
    for i in range(16):
        a(f"""
        s_min_i32 s{sT0}, s{sCLA+i}, 0x1000
        s_cmp_lt_i32 s{sCLA+i}, 1
        s_cselect_b32 s{sT0}, 0x1000, s{sT0}
        s_add_u32 s{sTOT}, s{sTOT}, s{sT0}
        """)
    a(f"""
    v_cvt_f32_u32 v{vA}, s{sTOT}
    s_mul_i32 s{sT0}, s{sA}, {int(o.wk * 1024)}
    v_rcp_f32 v{vA}, v{vA}
    v_cvt_f32_u32 v{vB_}, s{sT0}
    s_sub_u32 s{sT1}, s{sW}, 4
    v_mul_f32 v{vA}, v{vA}, v{vB_}
    v_cvt_u32_f32 v{vA}, v{vA}
    s_waitcnt vmcnt(4)
    v_lshlrev_b32 v{vE}, 15, v{vE}
    v_readfirstlane_b32 s{sWN}, v{vA}
    v_lshlrev_b32 v{vE+1}, 15, v{vE+1}
    v_lshlrev_b32 v{vE+2}, 15, v{vE+2}
    v_lshlrev_b32 v{vE+3}, 15, v{vE+3}
    v_cndmask_b32 v{vE+1}, v{vOOB}, v{vE+1}, s[{sMP}:{sMP+1}]
    v_cndmask_b32 v{vE+3}, v{vOOB}, v{vE+3}, s[{sMP+2}:{sMP+3}]
    s_add_u32 s{sWN}, s{sWN}, s{sT1}
    s_lshr_b32 s{sWN}, s{sWN}, 2
    s_max_u32 s{sWN}, s{sWN}, {WMIN}
    s_min_u32 s{sWN}, s{sWN}, {WMAX}
    s_mul_i32 s{sW2}, s{sWN}, {o.boostmul}
    s_lshr_b32 s{sW2}, s{sW2}, 2
    s_min_u32 s{sW2}, s{sW2}, {WMAX}
    s_sub_u32 s{sBOOST}, s{sSE}, {o.boostat}
    s_cmp_eq_u32 s{sOWN}, 0
    s_cselect_b32 s{sBOOST}, -1, s{sBOOST}
    s_and_b32 s{sBOOST}, s{sBOOST}, -2
    s_mov_b32 s{sCNT}, {-(LAG-1) & 0xffffffff}
    s_add_u32 s{sLN}, s{sLEN}, 1
    """)
    stamp(1, vSTp)
    a("L_p_disp:")
    for W in range(WMIN, WMAX):
        a(f"s_cmp_eq_u32 s{sWN}, {W}\ns_cbranch_scc1 L_p_w{W}")
    a(f"s_branch L_p_w{WMAX}")
    for W in range(WMIN, WMAX + 1):
        a(f"L_p_w{W}:")
        for par in range(2):
            a(f"""
            s_lshr_b32 s{sT0}, s{sS}, 1
            s_cmp_lt_u32 s{sS}, s{sSE}
            v_readlane_b32 s{sE0}, v{vE+2*par}, s{sT0}
            v_readlane_b32 s{sE1}, v{vE+2*par+1}, s{sT0}
            s_cselect_b32 s{sE0}, s{sE0}, s{sOOB}
            s_cselect_b32 s{sE1}, s{sE1}, s{sOOB}
            s_add_u32 s{sS}, s{sS}, 1
            s_mov_b32 m0, s{sPB}
            s_cmp_lt_i32 s{sCNT}, 0
            s_waitcnt vmcnt({W-1})
            s_cbranch_scc1 L_p_nb{W}_{par}
            s_barrier
L_p_nb{W}_{par}:
            s_add_u32 s{sCNT}, s{sCNT}, 1
            s_cmp_eq_u32 s{sCNT}, s{sLN}
            s_cbranch_scc1 L_p_done
            """)
            seq = [(vKoff, sK, sE0), (vKoff, sK, sE1), (vVoff, sV, sE0), (vVoff, sV, sE1)]
            for i, (vo, sd, so) in enumerate(seq):
                if i:
                    a(f"s_add_u32 m0, s{sPB}, {4096*i}\ns_waitcnt vmcnt({W-1})")
                a(f"buffer_load_dwordx4 v{vo}, s[{sd}:{sd+3}], s{so} offen{nt} lds")
            a(f"""
            s_add_u32 s{sPB}, s{sPB}, {SLOT}
            s_cmp_ge_u32 s{sPB}, {NS*SLOT}
            s_cselect_b32 s{sT0}, {NS*SLOT}, 0
            s_sub_u32 s{sPB}, s{sPB}, s{sT0}
            """)
        a(f"""
        s_cmp_lg_u32 s{sS}, s{sBOOST}
        s_cbranch_scc1 L_p_w{W}
        s_mov_b32 s{sWN}, s{sW2}
        s_branch L_p_disp
        """)
    a("L_p_done:")
    stamp(3, vSTp)
    a(f"""
L_end:
    s_endpgm
.section .rodata,"a"
.p2align 6
.amdhsa_kernel {KN}_kernel
  .amdhsa_next_free_vgpr 216
  .amdhsa_next_free_sgpr 102
  .amdhsa_accum_offset 216
  .amdhsa_group_segment_fixed_size 0
  .amdhsa_kernarg_size 64
  .amdhsa_user_sgpr_count 2
  .amdhsa_user_sgpr_kernarg_segment_ptr 1
  .amdhsa_system_sgpr_workgroup_id_x 1
.end_amdhsa_kernel
""")
    return a.text(), LDS

if __name__ == "__main__":
    p = argparse.ArgumentParser()
    p.add_argument("-o", default="k.s")
    p.add_argument("--ns", type=int, default=6)
    p.add_argument("--delta", type=int, default=6)
    p.add_argument("--thr", type=float, default=6.0)
    p.add_argument("--kp", type=int, default=7)
    p.add_argument("--kfast", type=int, default=0)
    p.add_argument("--kstep", type=int, default=2)
    p.add_argument("--kstep2", type=int, default=1)
    p.add_argument("--wk", type=float, default=24.0)
    p.add_argument("--boostmul", type=int, default=4)
    p.add_argument("--boostat", type=int, default=6)
    p.add_argument("--nt", type=int, default=1)
    p.add_argument("--nocompute", type=int, default=0)
    p.add_argument("--noserv", type=int, default=0)
    p.add_argument("--nopub", type=int, default=0)
    p.add_argument("--pubflags", default="sc1")
    p.add_argument("--outflags", default="")
    p.add_argument("--stamps", type=int, default=0)
    o = p.parse_args()
    t, lds = gen(o)
    open(o.o, "w").write(t)
    print(lds)
```

```python
import argparse, struct, math

KN = "standalone__paged_block_table_kv_pagedattention__sampling"

def f2u(f):
    return struct.unpack("<I", struct.pack("<f", f))[0]

class Asm:
    def __init__(self):
        self.lines = []
    def __call__(self, s):
        for l in s.strip("\n").split("\n"):
            l = l.strip()
            if not l: continue
            if l.endswith(":") or l.startswith("."):
                self.lines.append(l)
            else:
                self.lines.append("    " + l)
    def text(self):
        return "\n".join(self.lines) + "\n"

def vr(b, n=1):
    return f"v{b}" if n == 1 else f"v[{b}:{b+n-1}]"

def gen(o):
    NS = o.ns; LAG = 4; SLOT = 16384
    assert NS >= LAG + 1
    LDS = NS * SLOT
    KVB = 4100 * 32768
    OOB = KVB
    PSL = 4736
    WSB = 128 * 4 * PSL
    WMIN, WMAX = 2, 13
    ntk = (" " + o.kflags) if o.kflags else ""
    ntv = (" " + o.vflags) if o.vflags else ""
    a = Asm()
    hdr = open("cdna_kernels/%s.s.ref" % KN).read().split("\n")
    for l in hdr:
        if l.startswith("; @launch"): break
        a.lines.append(l)
    a.lines.append(f"; @launch grid=(256,1,1) block=(512,1,1) lds={LDS}")
    a(f"""
.amdgcn_target "amdgcn-amd-amdhsa--gfx950"
.text
.globl {KN}_kernel
.p2align 8
.type {KN}_kernel,@function
{KN}_kernel:
""")
    sH, sB, sW, sOWN = 24, 25, 26, 27
    sT0, sT1, sT2, sT3 = 28, 29, 30, 31
    sKA = 36
    sCL, sCLE, sN, sA, sZQ, sS0, sLEN = 32, 33, 34, 35, 20, 21, 22
    sSTAMP = 92
    def srd(base, ptr, nbytes):
        a(f"""
        s_mov_b32 s{base}, s{ptr}
        s_and_b32 s{base+1}, s{ptr+1}, 0xffff
        s_mov_b32 s{base+2}, {hex(nbytes)}
        s_mov_b32 s{base+3}, 0x20000
        """)
    def stamp(k, vtmp, src=None):
        if not o.stamps: return
        if src is None:
            a("s_memrealtime s[96:97]\ns_waitcnt lgkmcnt(0)"); src = 96
        a(f"""
        v_mov_b32 v{vtmp}, s{src}
        v_mov_b32 v{vtmp+1}, s{src+1}
        s_lshl_b32 s98, s2, 3
        s_add_u32 s98, s98, s{sW}
        s_lshl_b32 s98, s98, 6
        s_add_u32 s98, s98, {400*1024*1024 + 8*k}
        v_mov_b32 v{vtmp+2}, 0
        s_mov_b64 exec, 1
        buffer_store_dwordx2 v[{vtmp}:{vtmp+1}], v{vtmp+2}, s[{sSTAMP}:{sSTAMP+3}], s98 offen
        s_mov_b64 exec, -1
        """)
    def schedule():
        a(f"""
        s_min_i32 s{sCLE}, s{sCL}, 0x1000
        s_cmp_lt_i32 s{sCL}, 1
        s_cselect_b32 s{sZQ}, 1, 0
        s_cselect_b32 s{sCLE}, 0x1000, s{sCLE}
        s_add_u32 s{sN}, s{sCLE}, 31
        s_lshr_b32 s{sN}, s{sN}, 5
        s_add_u32 s{sA}, s{sN}, {o.delta + 2}
        s_lshr_b32 s{sA}, s{sA}, 2
        s_lshl_b32 s{sA}, s{sA}, 1
        s_min_u32 s{sA}, s{sA}, s{sN}
        s_sub_u32 s{sLEN}, s{sN}, s{sA}
        s_cmp_eq_u32 s{sOWN}, 0
        s_cselect_b32 s{sS0}, s{sA}, 0
        s_cselect_b32 s{sLEN}, s{sLEN}, s{sA}
        """)
    a(f"""
    s_cmp_ge_u32 s2, 256
    s_cbranch_scc1 L_end
    s_load_dwordx16 s[{sKA}:{sKA+15}], s[0:1], 0
    """)
    if o.stamps:
        a("s_memrealtime s[90:91]")
    a(f"""
    v_lshrrev_b32 v1, 6, v0
    s_and_b32 s{sH}, s2, 7
    v_readfirstlane_b32 s{sW}, v1
    s_bfe_u32 s{sB}, s2, 0x40003
    s_cmp_lt_u32 s2, 128
    s_cselect_b32 s{sOWN}, 1, 0
    s_lshl_b32 s{sT3}, s{sB}, 2
    v_and_b32 v1, 63, v0
    s_cmp_ge_u32 s{sW}, 4
    s_cbranch_scc1 L_producer
    """)
    vLane, vG4, vTA, vTB = 1, 2, 3, 199
    vKa = 4; vVa = 8; Kf = 16; Vf = 48; Qf = 80; S = 96; P = 104; O = 108; L = 140; ONES = 144
    MC = 148; T0 = 149; X = 150; T1 = 158; T2 = 159; PB = 160; vPoll = 196; vOutOff = 197; vWsOff = 198
    vDbg = 200; vWsOff2 = 201; vZ = 202; vPoll2 = 203; vNinf = 208; vST = 212
    sWS, sOUT, sDBG = 4, 8, 12
    sC, sTH, sREM, sEVT, sSLOT, sDELTA = 16, 17, 18, 19, 23, 52
    sNV, sBIT, sST, sPOLL, sSL, sSO, sHI, sFO, sV0 = 53, 54, 55, 72, 73, 74, 75, 76, 77
    sM0 = 56
    cscale = math.log2(math.e) / math.sqrt(128.0)
    a(f"""
    v_lshrrev_b32 v{vTA}, 4, v{vLane}
    v_lshlrev_b32 v{vG4}, 2, v{vTA}
    v_and_b32 v{vTB}, 15, v{vLane}
    v_xor_b32 v{vKa}, v{vTA}, v{vTB}
    v_lshlrev_b32 v{vKa}, 4, v{vKa}
    v_lshl_add_u32 v{vKa}, v{vTB}, 8, v{vKa}
    v_xor_b32 v{vKa+1}, 64, v{vKa}
    v_xor_b32 v{vKa+2}, 0x80, v{vKa}
    v_xor_b32 v{vKa+3}, 0xc0, v{vKa}
    v_lshlrev_b32 v{vOutOff}, 8, v{vTB}
    v_lshl_add_u32 v{vOutOff}, v{vTA}, 3, v{vOutOff}
    v_lshlrev_b32 v{vWsOff}, 4, v{vLane}
    v_lshlrev_b32 v{vWsOff2}, 3, v{vLane}
    v_lshrrev_b32 v{vTA}, 2, v{vLane}
    v_and_b32 v{vTB}, 7, v{vTA}
    v_lshlrev_b32 v{vTB}, 5, v{vTB}
    v_lshl_add_u32 v{vVa}, v{vTA}, 8, v{vTB}
    v_and_b32 v{vTB}, 3, v{vLane}
    v_lshl_add_u32 v{vVa}, v{vTB}, 3, v{vVa}
    v_add_u32 v{vVa}, 0x2000, v{vVa}
    s_waitcnt lgkmcnt(0)
    s_load_dword s{sCL}, s[{sKA+8}:{sKA+9}], s{sT3}
    """)
    for n in range(1, 8):
        a(f"v_xor_b32 v{vVa+n}, {n*32}, v{vVa}")
    a(f"""
    s_lshl_b32 s{sT0}, s{sH}, 4
    s_add_u32 s{sT0}, s{sT0}, s{sB}
    s_lshr_b32 s{sT1}, s{sT0}, 1
    s_lshl_b32 s{sT1}, s{sT1}, 2
    v_mov_b32 v{vDbg}, s{sT1}
    s_lshl_b32 s{sSO}, s{sT0}, 2
    s_add_u32 s{sSO}, s{sSO}, s{sW}
    s_mul_i32 s{sSO}, s{sSO}, {PSL}
    s_and_b32 s{sT1}, s{sB}, 1
    s_lshl_b32 s{sBIT}, 1, s{sT1}
    v_mov_b32 v{vNinf}, 0xff800000
    s_mov_b32 s{sC}, {hex(f2u(cscale))}
    s_mov_b32 s{sTH}, {hex(f2u(o.thr))}
    s_mov_b32 s{sSLOT}, 1
    s_mov_b32 s{sSL}, {SLOT}
    s_mov_b32 s{sHI}, 0xffff0000
    s_lshl_b32 s{sT0}, s{sW}, 12
    """)
    for s in range(4):
        a(f"v_add_u32 v{X+s}, s{sT0}, v{vKa+s}")
    for i in range(12):
        a(f"v_add_u32 v{vKa+i}, {SLOT}, v{vKa+i}")
    for i in range(4):
        a(f"v_mov_b32 v{ONES+i}, 0x3f803f80")
    for i in range(36):
        a(f"v_mov_b32 v{O+i}, 0")
    for i in range(32):
        a(f"v_mov_b32 v{Vf+i}, 0")
    for i in range(8):
        a(f"v_mov_b32 v{S+i}, v{vNinf}")
    a(f"v_mov_b32 v{MC}, {hex(f2u(-3.0e38))}")
    srd(sWS, sKA + 14, WSB)
    a(f"""
    s_add_u32 s{sFO}, s{sSO}, 4608
    v_mov_b32 v{vZ}, 0
    buffer_load_dword v{vPoll}, v{vZ}, s[{sWS}:{sWS+3}], s{sFO} offen sc1
    """)
    srd(sOUT, sKA + 10, 2097152)
    srd(sDBG, sKA + 12, 256)
    if o.stamps:
        srd(sSTAMP, sKA + 14, 537395200)
        stamp(0, vST, 90)
    a("s_waitcnt lgkmcnt(0)")
    schedule()
    stamp(1, vST)
    a(f"""
    s_cmp_eq_u32 s{sLEN}, 0
    s_cbranch_scc1 L_end
    s_mov_b32 s{sREM}, s{sLEN}
    s_add_u32 s{sT0}, s{sS0}, s{sLEN}
    s_lshl_b32 s{sT0}, s{sT0}, 5
    s_sub_u32 s{sNV}, s{sCLE}, s{sT0}
    s_add_u32 s{sNV}, s{sNV}, 32
    s_cmp_lt_u32 s{sA}, s{sN}
    s_cselect_b32 s{sST}, s{sOWN}, 0
    {"s_mov_b32 s%d, 0" % sST if o.noserv else ""}
    s_min_u32 s{sEVT}, s{sREM}, {o.kp}
    s_cmp_eq_u32 s{sST}, 0
    s_cselect_b32 s{sEVT}, 0, s{sEVT}
    s_barrier
    """)
    stamp(2, vST)
    for s in range(4):
        a(f"ds_read_b128 {vr(Qf+4*s,4)}, v{X+s}")
    a(f"""
    s_cmp_eq_u32 s{sZQ}, 0
    s_waitcnt vmcnt(0) lgkmcnt(0)
    v_readfirstlane_b32 s{sV0}, v{vPoll}
    v_mov_b32 v{vPoll2}, 0
    s_cbranch_scc1 L_kv
    """)
    for i in range(16):
        a(f"v_mov_b32 v{Qf+i}, 0")
    a(f"""
L_kv:
    s_cmp_eq_u32 s{sREM}, s{sEVT}
    s_cbranch_scc1 L_service
L_kvbar:
    s_barrier
L_body:
    """)
    def adv_slot_scalar():
        a(f"""
        s_add_u32 s{sSLOT}, s{sSLOT}, 1
        s_cmp_eq_u32 s{sSLOT}, {NS}
        s_cselect_b32 s{sSLOT}, 0, s{sSLOT}
        s_cselect_b32 s{sDELTA}, {hex((-(NS-1)*SLOT) & 0xffffffff)}, s{sSL}
        """)
    if not o.nocompute:
        for t in range(2):
            for s in range(4):
                off = f" offset:{4096*t}" if t else ""
                a(f"ds_read_b128 {vr(Kf+(t*4+s)*4,4)}, v{vKa+s}{off}")
        a(f"""
        v_max3_f32 v{T0}, v{S}, v{S+1}, v{S+2}
        v_max3_f32 v{T1}, v{S+3}, v{S+4}, v{S+5}
        v_max3_f32 v{T0}, v{T0}, v{S+6}, v{S+7}
        v_max_f32 v{T0}, v{T0}, v{T1}
        v_fma_f32 v{T1}, v{T0}, s{sC}, -v{MC}
        v_cmp_lt_f32 vcc, s{sTH}, v{T1}
        s_cbranch_vccnz L_rare
L_back:
        """)
        for j in range(8):
            a(f"v_fma_f32 v{X+j}, v{S+j}, s{sC}, -v{MC}")
        for j in range(8):
            a(f"v_exp_f32 v{X+j}, v{X+j}")
        a("s_nop 0")
        for j in range(4):
            a(f"v_cvt_pk_bf16_f32 v{P+j}, v{X+2*j}, v{X+2*j+1}")
        a(f"s_waitcnt lgkmcnt(0)")
        a(f"s_cmp_eq_u32 s{sREM}, 0")
        a(f"v_mfma_f32_16x16x32_bf16 {vr(L,4)}, {vr(ONES,4)}, {vr(P,4)}, {vr(L,4)}")
        for n in range(8):
            a(f"v_mfma_f32_16x16x32_bf16 {vr(O+4*n,4)}, {vr(Vf+4*n,4)}, {vr(P,4)}, {vr(O+4*n,4)}")
            a(f"ds_read_b64_tr_b16 {vr(Vf+4*n,2)}, v{vVa+n}")
            a(f"ds_read_b64_tr_b16 {vr(Vf+4*n+2,2)}, v{vVa+n} offset:4096")
        a(f"s_cbranch_scc1 L_fin")
        adv_slot_scalar()
        k = 0
        for s in range(4):
            for t in range(2):
                c = "0" if s == 0 else vr(S+4*t,4)
                a(f"v_mfma_f32_16x16x32_bf16 {vr(S+4*t,4)}, {vr(Kf+(t*4+s)*4,4)}, {vr(Qf+4*s,4)}, {c}")
                for _ in range(2):
                    if k < 12:
                        a(f"v_add_u32 v{vKa+k}, s{sDELTA}, v{vKa+k}"); k += 1
    else:
        a(f"""
L_back:
        s_cmp_eq_u32 s{sREM}, 0
        s_cbranch_scc1 L_fin
        """)
    a(f"""
    s_sub_u32 s{sREM}, s{sREM}, 1
    s_waitcnt lgkmcnt(0)
    s_cmp_lg_u32 s{sREM}, 0
    s_cbranch_scc1 L_kv
    s_cmp_ge_i32 s{sNV}, 32
    s_nop 7
    s_cbranch_scc1 L_body
    """)
    for t in range(2):
        for r in range(4):
            j = t*4 + r
            a(f"s_sub_u32 s{sT0}, s{sNV}, {16*t+r}")
            a(f"v_cmp_gt_i32 s[{sM0+2*j}:{sM0+2*j+1}], s{sT0}, v{vG4}")
    a("s_nop 1")
    for j in range(8):
        a(f"v_cndmask_b32 v{S+j}, v{vNinf}, v{S+j}, s[{sM0+2*j}:{sM0+2*j+1}]")
    a("s_branch L_body")
    a(f"""
L_rare:
    v_mov_b32 v{T1}, v{T0}
    s_nop 1
    v_permlane32_swap_b32 v{T0}, v{T1}
    s_nop 1
    v_max_f32 v{T0}, v{T0}, v{T1}
    v_mov_b32 v{T1}, v{T0}
    s_nop 1
    v_permlane16_swap_b32 v{T0}, v{T1}
    s_nop 1
    v_max_f32 v{T0}, v{T0}, v{T1}
    v_mul_f32 v{T0}, s{sC}, v{T0}
    v_max_f32 v{T0}, v{T0}, v{MC}
    v_sub_f32 v{T1}, v{MC}, v{T0}
    v_exp_f32 v{T1}, v{T1}
    v_mov_b32 v{MC}, v{T0}
    s_nop 0
    """)
    for i in range(33):
        a(f"v_mul_f32 v{O+i}, v{T1}, v{O+i}")
    a("s_branch L_back")
    a(f"""
L_service:
    s_mov_b32 s{sT3}, 0
L_service2:
    s_waitcnt vmcnt(0)
    s_cmp_eq_u32 s{sST}, 2
    s_cbranch_scc1 L_sv_fold
    v_readfirstlane_b32 s{sPOLL}, v{vPoll}
    v_readfirstlane_b32 s{sT0}, v{vPoll2}
    s_and_b32 s{sT0}, s{sT0}, s{sBIT}
    s_cbranch_scc1 L_sv_load
    s_cmp_eq_u32 s{sPOLL}, s{sV0}
    s_cbranch_scc1 L_sv_poll
L_sv_load:
    """)
    for n in range(4):
        a(f"buffer_load_dwordx4 {vr(PB+4*n,4)}, v{vWsOff}, s[{sWS}:{sWS+3}], s{sSO} offen offset:{n*1024} sc1")
    a(f"""
    s_add_u32 s{sT0}, s{sSO}, 4096
    buffer_load_dwordx2 {vr(PB+16,2)}, v{vWsOff2}, s[{sWS}:{sWS+3}], s{sT0} offen sc1
    s_mov_b32 s{sST}, 2
    s_branch L_sv_ret
L_sv_poll:
    buffer_load_dword v{vPoll}, v{vZ}, s[{sWS}:{sWS+3}], s{sFO} offen sc1
    s_and_b32 s{sT0}, s{sT3}, 15
    s_cmp_lg_u32 s{sT0}, 15
    s_cbranch_scc1 L_sv_ret
    buffer_load_dword v{vPoll2}, v{vDbg}, s[{sDBG}:{sDBG+3}], 0 offen sc1
    s_branch L_sv_ret
L_sv_fold:
    v_max_f32 v{T0}, v{MC}, v{PB+16}
    v_sub_f32 v{T1}, v{MC}, v{T0}
    v_sub_f32 v{T2}, v{PB+16}, v{T0}
    v_exp_f32 v{T1}, v{T1}
    v_exp_f32 v{T2}, v{T2}
    v_mov_b32 v{MC}, v{T0}
    s_mov_b32 s{sST}, 0
    v_mul_f32 v{T2}, v{T2}, v{PB+17}
    v_fma_f32 v{L}, v{L}, v{T1}, v{T2}
    """)
    for i in range(16):
        a(f"""
        v_lshlrev_b32 v{X}, 16, v{PB+i}
        v_and_b32 v{X+1}, s{sHI}, v{PB+i}
        v_mul_f32 v{O+2*i}, v{T1}, v{O+2*i}
        v_mul_f32 v{O+2*i+1}, v{T1}, v{O+2*i+1}
        v_fmac_f32 v{O+2*i}, v{T2}, v{X}
        v_fmac_f32 v{O+2*i+1}, v{T2}, v{X+1}
        """)
    a(f"""
L_sv_ret:
    s_cmp_gt_u32 s{sREM}, {o.kfast}
    s_cselect_b32 s{sT0}, {o.kstep}, {o.kstep2}
    s_sub_i32 s{sEVT}, s{sREM}, s{sT0}
    s_max_i32 s{sEVT}, s{sEVT}, 0
    s_cmp_eq_u32 s{sST}, 0
    s_cselect_b32 s{sEVT}, 0, s{sEVT}
    s_cmp_eq_u32 s{sT3}, 0
    s_cbranch_scc1 L_kvbar
L_own_wait:
    s_add_u32 s{sT3}, s{sT3}, 1
    s_cmp_gt_u32 s{sT3}, 0x8000
    s_cbranch_scc1 L_out
    s_cmp_lg_u32 s{sST}, 0
    s_cbranch_scc1 L_service2
    s_branch L_out
L_fin:
    s_mov_b32 s{sT3}, 1
    s_cmp_lg_u32 s{sST}, 0
    s_nop 6
    """)
    if o.stamps:
        stamp(3, vST)
        a(f"s_cmp_lg_u32 s{sST}, 0")
    a(f"""
    s_cbranch_scc1 L_service2
L_out:
    v_rcp_f32 v{T0}, v{L}
    s_lshl_b32 s{sT0}, s{sB}, 3
    s_add_u32 s{sT0}, s{sT0}, s{sH}
    s_lshl_b32 s{sT0}, s{sT0}, 2
    s_add_u32 s{sT0}, s{sT0}, s{sW}
    s_lshl_b32 s{sT0}, s{sT0}, 12
    s_cmp_eq_u32 s{sOWN}, 0
    """)
    for n in range(8):
        for r in range(4):
            a(f"v_mul_f32 v{O+4*n+r}, v{T0}, v{O+4*n+r}")
        a(f"v_cvt_pk_bf16_f32 v{PB+2*n}, v{O+4*n}, v{O+4*n+1}")
        a(f"v_cvt_pk_bf16_f32 v{PB+2*n+1}, v{O+4*n+2}, v{O+4*n+3}")
    a("s_cbranch_scc1 L_publish")
    for n in range(8):
        a(f"buffer_store_dwordx2 {vr(PB+2*n,2)}, v{vOutOff}, s[{sOUT}:{sOUT+3}], s{sT0} offen offset:{32*n} {o.outflags}")
    if o.stamps:
        a("s_waitcnt vmcnt(0)")
        stamp(4, vST)
    a(f"""
    s_endpgm
L_publish:
    v_mov_b32 v{PB+16}, v{MC}
    v_mov_b32 v{PB+17}, v{L}
    s_add_u32 s{sT0}, s{sSO}, 4096
    v_mov_b32 v{T0}, s{sBIT}
    """)
    if not o.nopub:
        for n in range(4):
            a(f"buffer_store_dwordx4 {vr(PB+4*n,4)}, v{vWsOff}, s[{sWS}:{sWS+3}], s{sSO} offen offset:{n*1024} {o.pubflags}")
        a(f"buffer_store_dwordx2 {vr(PB+16,2)}, v{vWsOff2}, s[{sWS}:{sWS+3}], s{sT0} offen {o.pubflags}")
    a(f"""
    s_add_u32 s{sV0}, s{sV0}, 1
    v_mov_b32 v{T1}, s{sV0}
    s_waitcnt vmcnt(0)
    s_mov_b64 exec, 1
    buffer_store_dword v{T1}, v{vZ}, s[{sWS}:{sWS+3}], s{sFO} offen sc1
    s_mov_b64 exec, -1
    """)
    stamp(4, vST)
    a(f"""
    s_barrier
    s_cmp_lg_u32 s{sW}, 0
    s_cbranch_scc1 L_end
    s_mov_b64 exec, 1
    buffer_atomic_add v{T0}, v{vDbg}, s[{sDBG}:{sDBG+3}], 0 offen sc1
    s_endpgm
    """)
    vG, vR, vRow, vKoff, vVoff, vQoff, vA, vB_ = 2, 3, 4, 5, 6, 7, 9, 10
    vE = 12
    vOOB = 16; vI = 17; vSTp = 20
    sK, sV, sQ, sBT = 4, 8, 12, 16
    sCLA = 52
    sPB, sE0, sE1, sS, sSE, sCNT, sTOT, sWN, sOOB, sLN, sBOOST, sW2 = 68, 69, 70, 71, 72, 73, 74, 75, 76, 77, 78, 79
    sMP = 80
    a(f"""
L_producer:
    v_lshrrev_b32 v{vG}, 4, v1
    v_and_b32 v{vR}, 15, v1
    s_sub_u32 s{sT0}, s{sW}, 4
    s_lshl_b32 s{sPB}, s{sT0}, 10
    s_lshl_b32 s{sT0}, s{sT0}, 2
    s_lshl_b32 s{sT1}, s{sH}, 8
    v_add_u32 v{vRow}, s{sT0}, v{vG}
    v_xor_b32 v{vA}, v{vR}, v{vRow}
    v_lshlrev_b32 v{vA}, 4, v{vA}
    v_lshl_add_u32 v{vQoff}, v{vRow}, 8, v{vA}
    v_lshl_add_u32 v{vKoff}, v{vRow}, 11, v{vA}
    v_add_u32 v{vKoff}, s{sT1}, v{vKoff}
    v_lshlrev_b32 v{vB_}, 4, v1
    s_lshl_b32 s{sT2}, s{sB}, 10
    s_lshl_b32 s{sE0}, s{sB}, 3
    s_add_u32 s{sE0}, s{sE0}, s{sH}
    s_lshl_b32 s{sE0}, s{sE0}, 14
    s_mov_b32 m0, s{sPB}
    s_waitcnt lgkmcnt(0)
    """)
    srd(sBT, sKA + 6, 16384)
    a(f"""
    s_load_dword s{sCL}, s[{sKA+8}:{sKA+9}], s{sT3}
    s_load_dwordx16 s[{sCLA}:{sCLA+15}], s[{sKA+8}:{sKA+9}], 0
    buffer_load_dwordx4 {vr(vE,4)}, v{vB_}, s[{sBT}:{sBT+3}], s{sT2} offen
    """)
    srd(sQ, sKA + 0, 2097152)
    for i in range(4):
        if i:
            a(f"s_add_u32 m0, s{sPB}, {4096*i}\ns_add_u32 s{sE0}, s{sE0}, 4096")
        a(f"buffer_load_dwordx4 v{vQoff}, s[{sQ}:{sQ+3}], s{sE0} offen lds")
    srd(sK, sKA + 2, KVB)
    srd(sV, sKA + 4, KVB)
    if o.stamps:
        srd(sSTAMP, sKA + 14, 537395200)
    a(f"""
    v_and_b32 v{vA}, 7, v{vRow}
    v_lshlrev_b32 v{vA}, 1, v{vA}
    v_xor_b32 v{vA}, v{vR}, v{vA}
    v_lshlrev_b32 v{vA}, 4, v{vA}
    v_lshl_add_u32 v{vVoff}, v{vRow}, 11, v{vA}
    v_add_u32 v{vVoff}, s{sT1}, v{vVoff}
    v_mov_b32 v{vOOB}, {hex(OOB)}
    v_lshlrev_b32 v{vI}, 2, v1
    s_mov_b32 s{sOOB}, {hex(OOB)}
    s_add_u32 s{sPB}, s{sPB}, {SLOT}
    s_waitcnt lgkmcnt(0)
    """)
    schedule()
    a(f"""
    s_cmp_eq_u32 s{sLEN}, 0
    s_cbranch_scc1 L_end
    s_mov_b32 s{sS}, s{sS0}
    s_add_u32 s{sSE}, s{sS0}, s{sLEN}
    s_add_u32 s{sT0}, s{sCLE}, 15
    s_lshr_b32 s{sT0}, s{sT0}, 4
    s_sub_u32 s{sT1}, s{sT0}, 1
    s_sub_u32 s{sT2}, s{sT0}, 3
    v_cmp_gt_i32 s[{sMP}:{sMP+1}], s{sT1}, v{vI}
    v_cmp_gt_i32 s[{sMP+2}:{sMP+3}], s{sT2}, v{vI}
    s_mov_b32 s{sTOT}, 0
    """)
    for i in range(16):
        a(f"""
        s_min_i32 s{sT0}, s{sCLA+i}, 0x1000
        s_cmp_lt_i32 s{sCLA+i}, 1
        s_cselect_b32 s{sT0}, 0x1000, s{sT0}
        s_add_u32 s{sTOT}, s{sTOT}, s{sT0}
        """)
    a(f"""
    v_cvt_f32_u32 v{vA}, s{sTOT}
    s_mul_i32 s{sT0}, s{sA}, {int(o.wk * 1024)}
    v_rcp_f32 v{vA}, v{vA}
    v_cvt_f32_u32 v{vB_}, s{sT0}
    s_sub_u32 s{sT1}, s{sW}, 4
    v_mul_f32 v{vA}, v{vA}, v{vB_}
    v_cvt_u32_f32 v{vA}, v{vA}
    s_waitcnt vmcnt(4)
    v_lshlrev_b32 v{vE}, 15, v{vE}
    v_readfirstlane_b32 s{sWN}, v{vA}
    v_lshlrev_b32 v{vE+1}, 15, v{vE+1}
    v_lshlrev_b32 v{vE+2}, 15, v{vE+2}
    v_lshlrev_b32 v{vE+3}, 15, v{vE+3}
    v_cndmask_b32 v{vE+1}, v{vOOB}, v{vE+1}, s[{sMP}:{sMP+1}]
    v_cndmask_b32 v{vE+3}, v{vOOB}, v{vE+3}, s[{sMP+2}:{sMP+3}]
    s_add_u32 s{sWN}, s{sWN}, s{sT1}
    s_lshr_b32 s{sWN}, s{sWN}, 2
    s_max_u32 s{sWN}, s{sWN}, {WMIN}
    s_min_u32 s{sWN}, s{sWN}, {WMAX}
    s_mul_i32 s{sW2}, s{sWN}, {o.boostmul}
    s_lshr_b32 s{sW2}, s{sW2}, 2
    s_min_u32 s{sW2}, s{sW2}, {WMAX}
    s_sub_u32 s{sBOOST}, s{sSE}, {o.boostat}
    s_cmp_eq_u32 s{sOWN}, 0
    s_cselect_b32 s{sBOOST}, -1, s{sBOOST}
    s_and_b32 s{sBOOST}, s{sBOOST}, -2
    s_mov_b32 s{sCNT}, {-(LAG-1) & 0xffffffff}
    s_add_u32 s{sLN}, s{sLEN}, 1
    """)
    stamp(1, vSTp)
    a("L_p_disp:")
    for W in range(WMIN, WMAX):
        a(f"s_cmp_eq_u32 s{sWN}, {W}\ns_cbranch_scc1 L_p_w{W}")
    a(f"s_branch L_p_w{WMAX}")
    for W in range(WMIN, WMAX + 1):
        a(f"L_p_w{W}:")
        for par in range(2):
            a(f"""
            s_lshr_b32 s{sT0}, s{sS}, 1
            s_cmp_lt_u32 s{sS}, s{sSE}
            v_readlane_b32 s{sE0}, v{vE+2*par}, s{sT0}
            v_readlane_b32 s{sE1}, v{vE+2*par+1}, s{sT0}
            s_cselect_b32 s{sE0}, s{sE0}, s{sOOB}
            s_cselect_b32 s{sE1}, s{sE1}, s{sOOB}
            s_add_u32 s{sS}, s{sS}, 1
            s_mov_b32 m0, s{sPB}
            s_cmp_lt_i32 s{sCNT}, 0
            s_waitcnt vmcnt({W-1})
            s_cbranch_scc1 L_p_nb{W}_{par}
            s_barrier
L_p_nb{W}_{par}:
            s_add_u32 s{sCNT}, s{sCNT}, 1
            s_cmp_eq_u32 s{sCNT}, s{sLN}
            s_cbranch_scc1 L_p_done
            """)
            seq = [(vKoff, sK, sE0), (vKoff, sK, sE1), (vVoff, sV, sE0), (vVoff, sV, sE1)]
            for i, (vo, sd, so) in enumerate(seq):
                if i:
                    a(f"s_add_u32 m0, s{sPB}, {4096*i}\ns_waitcnt vmcnt({W-1})")
                a(f"buffer_load_dwordx4 v{vo}, s[{sd}:{sd+3}], s{so} offen{ntk if sd == sK else ntv} lds")
            a(f"""
            s_add_u32 s{sPB}, s{sPB}, {SLOT}
            s_cmp_ge_u32 s{sPB}, {NS*SLOT}
            s_cselect_b32 s{sT0}, {NS*SLOT}, 0
            s_sub_u32 s{sPB}, s{sPB}, s{sT0}
            """)
        a(f"""
        s_cmp_lg_u32 s{sS}, s{sBOOST}
        s_cbranch_scc1 L_p_w{W}
        s_mov_b32 s{sWN}, s{sW2}
        s_branch L_p_disp
        """)
    a("L_p_done:")
    stamp(3, vSTp)
    a(f"""
L_end:
    s_endpgm
.section .rodata,"a"
.p2align 6
.amdhsa_kernel {KN}_kernel
  .amdhsa_next_free_vgpr 216
  .amdhsa_next_free_sgpr 102
  .amdhsa_accum_offset 216
  .amdhsa_group_segment_fixed_size 0
  .amdhsa_kernarg_size 64
  .amdhsa_user_sgpr_count 2
  .amdhsa_user_sgpr_kernarg_segment_ptr 1
  .amdhsa_system_sgpr_workgroup_id_x 1
.end_amdhsa_kernel
""")
    return a.text(), LDS

if __name__ == "__main__":
    p = argparse.ArgumentParser()
    p.add_argument("-o", default="k.s")
    p.add_argument("--ns", type=int, default=6)
    p.add_argument("--delta", type=int, default=6)
    p.add_argument("--thr", type=float, default=6.0)
    p.add_argument("--kp", type=int, default=7)
    p.add_argument("--kfast", type=int, default=0)
    p.add_argument("--kstep", type=int, default=2)
    p.add_argument("--kstep2", type=int, default=1)
    p.add_argument("--wk", type=float, default=24.0)
    p.add_argument("--boostmul", type=int, default=4)
    p.add_argument("--boostat", type=int, default=6)
    p.add_argument("--kflags", default="nt")
    p.add_argument("--vflags", default="nt")
    p.add_argument("--nocompute", type=int, default=0)
    p.add_argument("--noserv", type=int, default=0)
    p.add_argument("--nopub", type=int, default=0)
    p.add_argument("--pubflags", default="sc1")
    p.add_argument("--outflags", default="")
    p.add_argument("--stamps", type=int, default=0)
    o = p.parse_args()
    t, lds = gen(o)
    open(o.o, "w").write(t)
    print(lds)
```

```python
import argparse, struct, math

KN = "standalone__paged_block_table_kv_pagedattention__sampling"

def f2u(f):
    return struct.unpack("<I", struct.pack("<f", f))[0]

class Asm:
    def __init__(self):
        self.lines = []
    def __call__(self, s):
        for l in s.strip("\n").split("\n"):
            l = l.strip()
            if not l: continue
            if l.endswith(":") or l.startswith("."):
                self.lines.append(l)
            else:
                self.lines.append("    " + l)
    def text(self):
        return "\n".join(self.lines) + "\n"

def vr(b, n=1):
    return f"v{b}" if n == 1 else f"v[{b}:{b+n-1}]"

def waits(w):
    base = int(math.floor(w)); frac = int(round((w - base) * 4))
    order = [0, 2, 1, 3]
    r = [base - 1] * 4
    for i in range(frac): r[order[i]] = base
    return r

def gen(o):
    NS = o.ns; LAG = o.lag; SLOT = 16384
    assert NS >= LAG + 1
    assert max(o.w1, o.w2, o.wh) <= 4 * LAG - 3
    LIST = NS * SLOT
    LDS = LIST + 512
    KVB = 4100 * 32768
    OOB = KVB
    PSL = 4736
    WSB = 8 * 32 * 4 * PSL
    ntk = (" " + o.kflags) if o.kflags else ""
    ntv = (" " + o.vflags) if o.vflags else ""
    a = Asm()
    hdr = open("cdna_kernels/%s.s.ref" % KN).read().split("\n")
    for l in hdr:
        if l.startswith("; @launch"): break
        a.lines.append(l)
    a.lines.append(f"; @launch grid=(256,1,1) block=(512,1,1) lds={LDS}")
    a(f"""
.amdgcn_target "amdgcn-amd-amdhsa--gfx950"
.text
.globl {KN}_kernel
.p2align 8
.type {KN}_kernel,@function
{KN}_kernel:
""")
    sH, sIDX, sW, sOWN = 24, 25, 26, 27
    sT0, sT1, sT2, sT3 = 28, 29, 30, 31
    sKA = 36
    sSTAMP = 92
    def srd(base, ptr, nbytes):
        a(f"""
        s_mov_b32 s{base}, s{ptr}
        s_and_b32 s{base+1}, s{ptr+1}, 0xffff
        s_mov_b32 s{base+2}, {hex(nbytes)}
        s_mov_b32 s{base+3}, 0x20000
        """)
    def stamp(k, vtmp, src=None):
        if not o.stamps: return
        if src is None:
            a("s_memrealtime s[96:97]\ns_waitcnt lgkmcnt(0)"); src = 96
        a(f"""
        v_mov_b32 v{vtmp}, s{src}
        v_mov_b32 v{vtmp+1}, s{src+1}
        s_lshl_b32 s98, s2, 3
        s_add_u32 s98, s98, s{sW}
        s_lshl_b32 s98, s98, 6
        s_add_u32 s98, s98, {400*1024*1024 + 8*k}
        v_mov_b32 v{vtmp+2}, 0
        s_mov_b64 exec, 1
        buffer_store_dwordx2 v[{vtmp}:{vtmp+1}], v{vtmp+2}, s[{sSTAMP}:{sSTAMP+3}], s98 offen
        s_mov_b64 exec, -1
        """)
    a(f"""
    s_cmp_ge_u32 s2, 256
    s_cbranch_scc1 L_end
    s_load_dwordx16 s[{sKA}:{sKA+15}], s[0:1], 0
    """)
    if o.stamps:
        a("s_memrealtime s[90:91]")
    a(f"""
    v_lshrrev_b32 v1, 6, v0
    s_and_b32 s{sH}, s2, 7
    v_readfirstlane_b32 s{sW}, v1
    s_bfe_u32 s{sIDX}, s2, 0x40003
    s_cmp_lt_u32 s2, 128
    s_cselect_b32 s{sOWN}, 1, 0
    v_and_b32 v1, 63, v0
    s_cmp_lt_u32 s{sW}, 4
    s_cbranch_scc1 L_consumer
    """)
    vG, vR, vRow, vKoff, vVoff, vQoff, vCL = 2, 3, 4, 5, 6, 7, 8
    vA, vB_, vCLE, vN, vN1, vS, vRm, vPE, vPS, vLen, vLen1, vStart, vFl, vF, vZQ = 9, 10, 11, 12, 13, 14, 15, 16, 17, 18, 19, 20, 21, 22, 23
    vE0, vE1 = 24, 25
    vBT = 26
    vAdd0 = 32; vAdd1 = 35; vBoff = 38; vFm1 = 41; vZero = 44; vQv = 45; vRel = 46; vTmp = 50
    vRecP = 56
    vSTp = 60
    sK, sV, sQ, sBT, sCLs = 4, 8, 12, 16, 20
    sPL, sPB, sE0, sE1, sCo, sCh, sMask, sFt, sCNT, sP0, sP1 = 32, 33, 34, 35, 52, 53, 54, 55, 56, 57, 58
    sX0, sX1, sX2, sX3, sX4, sX5, sBOOST = 59, 60, 61, 62, 63, 64, 65
    sMP = 66
    a(f"""
    v_lshrrev_b32 v{vG}, 4, v1
    v_and_b32 v{vR}, 15, v1
    s_sub_u32 s{sT0}, s{sW}, 4
    s_lshl_b32 s{sPB}, s{sT0}, 10
    s_lshl_b32 s{sT0}, s{sT0}, 2
    s_lshl_b32 s{sT1}, s{sH}, 8
    v_add_u32 v{vRow}, s{sT0}, v{vG}
    v_xor_b32 v{vA}, v{vR}, v{vRow}
    v_lshlrev_b32 v{vA}, 4, v{vA}
    v_lshl_add_u32 v{vQoff}, v{vRow}, 8, v{vA}
    v_lshl_add_u32 v{vKoff}, v{vRow}, 11, v{vA}
    v_add_u32 v{vKoff}, s{sT1}, v{vKoff}
    v_lshlrev_b32 v{vB_}, 2, v{vR}
    v_max_u32 v{vS}, 1, v1
    s_lshl_b32 s{sT0}, s{sIDX}, 10
    s_sub_u32 s{sT0}, s{sT0}, 8
    v_lshl_add_u32 v{vS}, v{vS}, 3, s{sT0}
    s_lshl_b32 s{sE0}, s{sIDX}, 3
    s_add_u32 s{sE0}, s{sE0}, s{sH}
    s_lshl_b32 s{sE0}, s{sE0}, 14
    s_mov_b32 m0, s{sPB}
    s_cmp_eq_u32 s{sOWN}, 0
    s_waitcnt lgkmcnt(0)
    """)
    srd_keep = lambda base, ptr, nbytes: a(f"""
        s_mov_b32 s{base}, s{ptr}
        s_mov_b32 s{base+1}, s{ptr+1}
        s_mov_b32 s{base+2}, {hex(nbytes)}
        s_mov_b32 s{base+3}, 0x20000
        """)
    srd_keep(sBT, sKA + 6, 16384)
    srd_keep(sCLs, sKA + 8, 64)
    srd_keep(sQ, sKA + 0, 2097152)
    a(f"""
    s_cbranch_scc1 L_p_help
    buffer_load_dwordx2 {vr(vBT,2)}, v{vS}, s[{sBT}:{sBT+3}], 0 offen
    buffer_load_dword v{vCL}, v{vB_}, s[{sCLs}:{sCLs+3}], 0 offen
    """)
    def issue_q(ws=None):
        for i in range(4):
            if i:
                a(f"s_add_u32 m0, s{sPB}, {4096*i}\ns_add_u32 s{sE0}, s{sE0}, 4096")
                if ws: a(f"s_waitcnt vmcnt({ws[i]})")
            a(f"buffer_load_dwordx4 v{vQoff}, s[{sQ}:{sQ+3}], s{sE0} offen lds")
    def issue_kv(ws=None):
        seq = [(vKoff, sK, sE0), (vKoff, sK, sE1), (vVoff, sV, sE0), (vVoff, sV, sE1)]
        for i, (vo, sd, so) in enumerate(seq):
            if i:
                a(f"s_add_u32 m0, s{sPB}, {4096*i}")
                a(f"s_waitcnt vmcnt({ws[i]})" if ws else "s_nop 0")
            a(f"buffer_load_dwordx4 v{vo}, s[{sd}:{sd+3}], s{so} offen{ntk if sd == sK else ntv} lds")
    def voff_v():
        a(f"""
        v_and_b32 v{vA}, 7, v{vRow}
        v_lshlrev_b32 v{vA}, 1, v{vA}
        v_xor_b32 v{vA}, v{vR}, v{vA}
        v_lshlrev_b32 v{vA}, 4, v{vA}
        v_lshl_add_u32 v{vVoff}, v{vRow}, 11, v{vA}
        v_add_u32 v{vVoff}, s{sT1}, v{vVoff}
        """)
    issue_q()
    srd_keep(sK, sKA + 2, KVB)
    srd_keep(sV, sKA + 4, KVB)
    voff_v()
    a(f"""
    s_add_u32 s{sPB}, s{sPB}, {SLOT}
    s_mov_b32 m0, s{sPB}
    s_waitcnt vmcnt(5)
    v_readlane_b32 s{sE0}, v{vBT}, 1
    v_readlane_b32 s{sE1}, v{vBT+1}, 1
    s_lshl_b32 s{sE0}, s{sE0}, 15
    s_lshl_b32 s{sE1}, s{sE1}, 15
    """)
    issue_kv()
    if o.stamps:
        srd(sSTAMP, sKA + 14, 537395200)
        stamp(5, vSTp)
    a(f"""
    s_add_u32 s{sPB}, s{sPB}, {SLOT}
    s_mov_b32 s{sPL}, 2
    s_mov_b32 s{sCNT}, {(2 - LAG) & 0xffffffff}
    s_waitcnt vmcnt({8 + (1 if o.stamps else 0)})
    s_branch L_p_build
L_p_help:
    buffer_load_dword v{vCL}, v{vB_}, s[{sCLs}:{sCLs+3}], 0 offen
    """)
    srd_keep(sK, sKA + 2, KVB)
    srd_keep(sV, sKA + 4, KVB)
    if o.stamps:
        srd(sSTAMP, sKA + 14, 537395200)
    voff_v()
    a(f"""
    s_mov_b32 s{sPL}, 0
    s_mov_b32 s{sCNT}, {(-LAG) & 0xffffffff}
    s_waitcnt vmcnt(0)
L_p_build:
    """)
    def scan(v):
        for sh in (1, 2, 4, 8):
            a(f"s_nop 1\nv_add_u32_dpp v{v}, v{v}, v{v} row_shr:{sh} row_mask:0xf bank_mask:0xf bound_ctrl:0")
    a(f"""
    v_cmp_gt_i32 vcc, 1, v{vCL}
    v_mov_b32 v{vA}, 0x1000
    v_min_i32 v{vCLE}, v{vA}, v{vCL}
    v_mov_b32 v{vZero}, 0
    v_cndmask_b32 v{vCLE}, v{vCLE}, v{vA}, vcc
    v_cndmask_b32 v{vZQ}, 0, 1, vcc
    v_add_u32 v{vN}, 31, v{vCLE}
    v_lshrrev_b32 v{vN}, 5, v{vN}
    v_add_u32 v{vN1}, 15, v{vCLE}
    v_mov_b32 v{vS}, v{vN}
    v_lshrrev_b32 v{vN1}, 5, v{vN1}
    """)
    scan(vS)
    a(f"""
    s_nop 0
    v_readlane_b32 s{sCo}, v{vS}, 15
    s_add_u32 s{sCo}, s{sCo}, {16*o.delta + 16}
    s_lshr_b32 s{sCo}, s{sCo}, 5
    s_min_u32 s{sCo}, s{sCo}, 128
    s_max_u32 s{sCo}, s{sCo}, 1
    v_subrev_u32 v{vRm}, s{sCo}, v{vN}
    v_max_i32 v{vRm}, 0, v{vRm}
    v_mov_b32 v{vPE}, v{vRm}
    """)
    scan(vPE)
    a(f"""
    v_sub_u32 v{vPS}, v{vPE}, v{vRm}
    v_readlane_b32 s{sCh}, v{vPE}, 15
    s_add_u32 s{sCh}, s{sCh}, 15
    s_lshr_b32 s{sCh}, s{sCh}, 4
    s_mov_b32 s{sX5}, 0
    s_cmp_eq_u32 s{sOWN}, 0
    s_cbranch_scc1 L_p_bh
    v_min_u32 v{vLen}, s{sCo}, v{vN}
    v_cmp_eq_u32 vcc, s{sIDX}, v{vR}
    v_mov_b32 v{vStart}, 0
    v_readlane_b32 s{sX0}, v{vPS}, s{sIDX}
    v_readlane_b32 s{sX1}, v{vPE}, s{sIDX}
    v_cndmask_b32 v{vLen}, 0, v{vLen}, vcc
    v_mul_u32_u24 v{vA}, s{sCh}, v{vR}
    v_add_u32 v{vB_}, s{sCh}, v{vA}
    v_cmp_gt_u32 s[{sMP}:{sMP+1}], s{sX1}, v{vA}
    v_cmp_lt_u32 s[{sMP+2}:{sMP+3}], s{sX0}, v{vB_}
    s_and_b32 s{sX5}, s{sMP}, s{sMP+2}
    s_and_b32 s{sX5}, s{sX5}, 0xffff
    s_cmp_gt_u32 s{sX1}, s{sX0}
    s_cselect_b32 s{sX5}, s{sX5}, 0
    s_branch L_p_bj
L_p_bh:
    s_mul_i32 s{sP0}, s{sIDX}, s{sCh}
    s_add_u32 s{sP1}, s{sP0}, s{sCh}
    v_max_u32 v{vA}, s{sP0}, v{vPS}
    v_min_u32 v{vB_}, s{sP1}, v{vPE}
    v_sub_u32 v{vLen}, v{vB_}, v{vA}
    v_max_i32 v{vLen}, 0, v{vLen}
    v_sub_u32 v{vStart}, v{vA}, v{vPS}
    v_add_u32 v{vStart}, s{sCo}, v{vStart}
L_p_bj:
    v_sub_u32 v{vLen1}, v{vN1}, v{vStart}
    v_min_i32 v{vLen1}, v{vLen}, v{vLen1}
    v_cmp_lt_i32 vcc, 0, v{vLen}
    v_add_u32 v{vA}, v{vStart}, v{vLen}
    v_lshlrev_b32 v{vA}, 5, v{vA}
    v_cndmask_b32 v{vFl}, 0, 1, vcc
    s_and_b32 s{sMask}, vcc_lo, 0xffff
    v_add_u32 v{vFl}, v{vFl}, v{vLen}
    v_mov_b32 v{vF}, v{vFl}
    v_sub_u32 v{vRecP+2}, v{vCLE}, v{vA}
    v_add_u32 v{vRecP+2}, 32, v{vRecP+2}
    """)
    scan(vF)
    a(f"""
    v_mov_b32 v{vRecP}, v{vR}
    v_readlane_b32 s{sFt}, v{vF}, 15
    v_sub_u32 v{vF}, v{vF}, v{vFl}
    v_mov_b32 v{vRecP+1}, v{vLen}
    v_mov_b32 v{vRecP+3}, v{vZQ}
    s_max_u32 s{sFt}, s{sFt}, 1
    """)
    def tables(ts, tag):
        for t in ts:
            a(f"""
            v_mov_b32 v{vAdd0+t}, {hex(OOB)}
            v_mov_b32 v{vAdd1+t}, {hex(OOB)}
            v_mov_b32 v{vBoff+t}, 0x10000
            v_add_u32 v{vFm1+t}, {64*t-1}, v1
            """)
        a(f"""
        s_mov_b32 s{sX4}, s{sMask}
        s_cmp_eq_u32 s{sX4}, 0
        s_cbranch_scc1 L_p_tdone{tag}
L_p_tloop{tag}:
        s_ff1_i32_b32 s{sT0}, s{sX4}
        s_bitset0_b32 s{sX4}, s{sT0}
        v_readlane_b32 s{sX0}, v{vF}, s{sT0}
        v_readlane_b32 s{sX1}, v{vLen}, s{sT0}
        v_readlane_b32 s{sX2}, v{vLen1}, s{sT0}
        v_readlane_b32 s{sX3}, v{vStart}, s{sT0}
        s_lshl_b32 s{sT1}, s{sT0}, 3
        s_add_u32 s{sT1}, s{sT1}, s{sH}
        s_lshl_b32 s{sT1}, s{sT1}, 14
        s_or_b32 s{sT1}, s{sT1}, 1
        v_mov_b32 v{vQv}, s{sT1}
        s_lshl_b32 s{sT0}, s{sT0}, 10
        s_lshl_b32 s{sX3}, s{sX3}, 3
        s_add_u32 s{sT0}, s{sT0}, s{sX3}
        """)
        for t in ts:
            a(f"v_subrev_u32 v{vRel+t}, s{sX0}, v{vFm1+t}")
        for t in ts:
            a(f"""
            v_cmp_gt_u32 s[{sMP+6*t}:{sMP+6*t+1}], s{sX1}, v{vRel+t}
            v_cmp_gt_u32 s[{sMP+6*t+2}:{sMP+6*t+3}], s{sX2}, v{vRel+t}
            v_cmp_eq_u32 s[{sMP+6*t+4}:{sMP+6*t+5}], -1, v{vRel+t}
            v_lshl_add_u32 v{vTmp+t}, v{vRel+t}, 3, s{sT0}
            """)
        for t in ts:
            a(f"""
            v_cndmask_b32 v{vBoff+t}, v{vBoff+t}, v{vTmp+t}, s[{sMP+6*t}:{sMP+6*t+1}]
            v_cndmask_b32 v{vAdd0+t}, v{vAdd0+t}, v{vZero}, s[{sMP+6*t}:{sMP+6*t+1}]
            v_cndmask_b32 v{vAdd1+t}, v{vAdd1+t}, v{vZero}, s[{sMP+6*t+2}:{sMP+6*t+3}]
            v_cndmask_b32 v{vAdd0+t}, v{vAdd0+t}, v{vQv}, s[{sMP+6*t+4}:{sMP+6*t+5}]
            """)
        a(f"""
        s_cmp_lg_u32 s{sX4}, 0
        s_cbranch_scc1 L_p_tloop{tag}
L_p_tdone{tag}:
        """)
    tables([0], "a")
    a(f"""
    s_cmp_eq_u32 s{sOWN}, 0
    s_cbranch_scc0 L_p_nobt0
    buffer_load_dwordx2 {vr(vBT,2)}, v{vBoff}, s[{sBT}:{sBT+3}], 0 offen
L_p_nobt0:
    v_mbcnt_lo_u32_b32 v{vA}, s{sMask}, 0
    v_lshlrev_b32 v{vA}, 4, v{vA}
    v_add_u32 v{vA}, {LIST+16}, v{vA}
    s_bcnt1_i32_b32 s{sT0}, s{sMask}
    v_mov_b32 v{vTmp}, s{sT0}
    v_mov_b32 v{vTmp+1}, s{sX5}
    v_mov_b32 v{vB_}, {LIST}
    ds_write_b64 v{vB_}, {vr(vTmp,2)}
    s_cmp_eq_u32 s{sMask}, 0
    s_cbranch_scc1 L_p_norec
    s_mov_b32 exec_lo, s{sMask}
    s_mov_b32 exec_hi, 0
    ds_write_b128 v{vA}, {vr(vRecP,4)}
    s_mov_b64 exec, -1
L_p_norec:
    s_cmp_le_u32 s{sFt}, {64 - LAG}
    s_cbranch_scc1 L_p_not12
    """)
    tables([1, 2], "b")
    a(f"""
    buffer_load_dwordx2 {vr(vBT+2,2)}, v{vBoff+1}, s[{sBT}:{sBT+3}], 0 offen
    buffer_load_dwordx2 {vr(vBT+4,2)}, v{vBoff+2}, s[{sBT}:{sBT+3}], 0 offen
    s_waitcnt vmcnt(0)
L_p_not12:
    s_sub_u32 s{sBOOST}, s{sFt}, {o.boostat}
    s_cmp_eq_u32 s{sOWN}, 0
    s_cbranch_scc0 L_p_fix
    s_mov_b32 s{sBOOST}, -1
    s_waitcnt vmcnt(0)
L_p_fix:
    v_lshl_add_u32 v{vE0}, v{vBT}, 15, v{vAdd0}
    v_lshl_add_u32 v{vE1}, v{vBT+1}, 15, v{vAdd1}
    s_waitcnt lgkmcnt(0)
    """)
    stamp(1, vSTp)
    if o.stamps: a(f"s_cmp_eq_u32 s{sOWN}, 0")
    a(f"s_cbranch_scc1 L_p_loop_h")
    def ploop(tag, w, boost_to):
        ws = waits(w)
        a(f"""
L_p_loop_{tag}:
        v_readlane_b32 s{sE0}, v{vE0}, s{sPL}
        v_readlane_b32 s{sE1}, v{vE1}, s{sPL}
        s_add_u32 s{sPL}, s{sPL}, 1
        s_mov_b32 m0, s{sPB}
        s_cmp_lt_i32 s{sCNT}, 0
        s_waitcnt vmcnt({ws[0]})
        s_cbranch_scc1 L_p_nb_{tag}
        s_barrier
L_p_nb_{tag}:
        s_add_u32 s{sCNT}, s{sCNT}, 1
        s_cmp_eq_u32 s{sCNT}, s{sFt}
        s_cbranch_scc1 L_p_done
        s_bitcmp1_b32 s{sE0}, 0
        s_cbranch_scc1 L_p_q_{tag}
        """)
        issue_kv(ws)
        a(f"""
L_p_next_{tag}:
        s_add_u32 s{sPB}, s{sPB}, {SLOT}
        s_cmp_ge_u32 s{sPB}, {NS*SLOT}
        s_cselect_b32 s{sT0}, {NS*SLOT}, 0
        s_sub_u32 s{sPB}, s{sPB}, s{sT0}
        s_cmp_eq_u32 s{sPL}, 64
        s_cbranch_scc1 L_p_rot_{tag}
L_p_chk_{tag}:
        """)
        if boost_to:
            a(f"""
            s_cmp_lt_i32 s{sCNT}, s{sBOOST}
            s_cbranch_scc1 L_p_loop_{tag}
            s_branch L_p_loop_{boost_to}
            """)
        else:
            a(f"s_branch L_p_loop_{tag}")
        a(f"""
L_p_q_{tag}:
        s_sub_u32 s{sE0}, s{sE0}, 1
        """)
        issue_q(None if o.fastq else ws)
        a(f"""
        s_branch L_p_next_{tag}
L_p_rot_{tag}:
        v_lshl_add_u32 v{vE0}, v{vBT+2}, 15, v{vAdd0+1}
        v_lshl_add_u32 v{vE1}, v{vBT+3}, 15, v{vAdd1+1}
        v_mov_b32 v{vBT+2}, v{vBT+4}
        v_mov_b32 v{vBT+3}, v{vBT+5}
        v_mov_b32 v{vAdd0+1}, v{vAdd0+2}
        v_mov_b32 v{vAdd1+1}, v{vAdd1+2}
        s_mov_b32 s{sPL}, 0
        s_branch L_p_chk_{tag}
        """)
    ploop("o", o.w1, "b")
    ploop("b", o.w2, None)
    ploop("h", o.wh, None)
    a("L_p_done:")
    stamp(3, vSTp)
    a("s_endpgm")
    vLane, vG4, vTA, vTB = 1, 2, 3, 199
    vKa = 4; vVa = 8; Kf = 16; Vf = 48; Qf = 80; S = 96; P = 104; O = 108; L = 140; ONES = 144
    MC = 148; T0 = 149; X = 150; T1 = 158; T2 = 159; PB = 160; vPoll = 196; vOutOff = 197; vWsOff = 198
    vDbg = 200; vWsOff2 = 201; vMb = 202; vPoll2 = 203; vRec = 204; vNinf = 208; vList = 209; vBase = 210; vZ = 211; vST = 212; vHdr = 195; HB = [216, 234]; vOne = 194
    sWS, sOUT, sDBG = 4, 8, 12
    sC, sTH, sREM, sEVT, sSLOT, sDELTA, sNP, sHM = 16, 17, 18, 19, 20, 21, 22, 23
    sB, sNV, sDONE, sCUR, sPI, sZQ, sSL, sHI = 32, 33, 34, 35, 52, 53, 54, 55
    sM0 = 56
    sS0, sPF, sPV, sALL, sPM, sH0, sH1, sNH, sPK = 72, 73, 74, 75, 76, 78, 79, 80, 81
    cscale = math.log2(math.e) / math.sqrt(128.0)
    a(f"""
L_consumer:
    v_lshrrev_b32 v{vTA}, 4, v{vLane}
    v_lshlrev_b32 v{vG4}, 2, v{vTA}
    v_and_b32 v{vTB}, 15, v{vLane}
    v_mul_u32_u24 v{vMb}, {4*PSL}, v{vTB}
    s_lshl_b32 s{sT0}, s{sH}, 5
    s_add_u32 s{sT0}, s{sT0}, s{sIDX}
    s_lshl_b32 s{sT0}, s{sT0}, 2
    s_add_u32 s{sT0}, s{sT0}, s{sW}
    s_mul_i32 s{sS0}, s{sT0}, {PSL}
    s_add_u32 s{sT1}, s{sS0}, 4608
    v_xor_b32 v{vKa}, v{vTA}, v{vTB}
    v_lshlrev_b32 v{vKa}, 4, v{vKa}
    v_lshl_add_u32 v{vKa}, v{vTB}, 8, v{vKa}
    v_xor_b32 v{vKa+1}, 64, v{vKa}
    v_xor_b32 v{vKa+2}, 0x80, v{vKa}
    v_xor_b32 v{vKa+3}, 0xc0, v{vKa}
    v_lshlrev_b32 v{vOutOff}, 8, v{vTB}
    v_lshl_add_u32 v{vOutOff}, v{vTA}, 3, v{vOutOff}
    s_waitcnt lgkmcnt(0)
    """)
    srd(sWS, sKA + 14, WSB)
    a(f"""
    s_mov_b64 exec, 0xffff
    buffer_load_dword v{vBase}, v{vMb}, s[{sWS}:{sWS+3}], s{sT1} offen sc1
    s_mov_b64 exec, -1
    v_add_u32 v{vMb}, s{sT1}, v{vMb}
    v_lshlrev_b32 v{vWsOff}, 4, v{vLane}
    v_lshlrev_b32 v{vWsOff2}, 3, v{vLane}
    v_lshrrev_b32 v{vTA}, 2, v{vLane}
    v_and_b32 v{vTB}, 7, v{vTA}
    v_lshlrev_b32 v{vTB}, 5, v{vTB}
    v_lshl_add_u32 v{vVa}, v{vTA}, 8, v{vTB}
    v_and_b32 v{vTB}, 3, v{vLane}
    v_lshl_add_u32 v{vVa}, v{vTB}, 3, v{vVa}
    v_add_u32 v{vVa}, 0x2000, v{vVa}
    """)
    for n in range(1, 8):
        a(f"v_xor_b32 v{vVa+n}, {n*32}, v{vVa}")
    a(f"""
    s_lshl_b32 s{sT0}, s{sH}, 5
    v_mov_b32 v{vDbg}, s{sT0}
    v_mov_b32 v{vList}, {LIST}
    v_mov_b32 v{vHdr}, {LIST}
    v_mov_b32 v{vNinf}, 0xff800000
    v_mov_b32 v{vZ}, 0
    v_mov_b32 v{vPoll2}, 0
    s_mov_b32 s{sC}, {hex(f2u(cscale))}
    s_mov_b32 s{sTH}, {hex(f2u(o.thr))}
    s_mov_b32 s{sSLOT}, 0
    s_mov_b32 s{sSL}, {SLOT}
    s_mov_b32 s{sHI}, 0xffff0000
    s_mov_b32 s{sPI}, 0
    s_mov_b32 s{sNH}, 0
    s_mov_b32 s{sPK}, 0
    s_mov_b32 s{sALL}, 0
    s_mov_b32 s{sDONE}, 0
    s_mov_b32 s{sCUR}, 0
    """)
    for i in range(4):
        a(f"v_mov_b32 v{ONES+i}, 0x3f803f80")
    srd(sOUT, sKA + 10, 2097152)
    srd(sDBG, sKA + 12, 256)
    if o.stamps:
        srd(sSTAMP, sKA + 14, 537395200)
        stamp(0, vST, 90)
        stamp(1, vST)
    def init_state():
        for i in range(33):
            a(f"v_mov_b32 v{O+i}, 0")
        for i in range(32):
            a(f"v_mov_b32 v{Vf+i}, 0")
        for i in range(8):
            a(f"v_mov_b32 v{S+i}, v{vNinf}")
        a(f"v_mov_b32 v{MC}, {hex(f2u(-3.0e38))}")
    a(f"""
    s_waitcnt vmcnt(0)
    v_mov_b32 v{vPoll}, v{vBase}
L_piece:
    """)
    init_state()
    a(f"""
    s_lshl_b32 s{sT0}, s{sW}, 12
    """)
    for s in range(4):
        a(f"v_add_u32 v{X+s}, s{sT0}, v{vKa+s}")
    def adv_slot_scalar():
        a(f"""
        s_add_u32 s{sSLOT}, s{sSLOT}, 1
        s_cmp_eq_u32 s{sSLOT}, {NS}
        s_cselect_b32 s{sSLOT}, 0, s{sSLOT}
        s_cselect_b32 s{sDELTA}, {hex((-(NS-1)*SLOT) & 0xffffffff)}, s{sSL}
        """)
    adv_slot_scalar()
    for i in range(12):
        a(f"v_add_u32 v{vKa+i}, s{sDELTA}, v{vKa+i}")
    a("s_barrier")
    stamp(2, vST)
    a(f"""
    ds_read_b64 v[{T1}:{T2}], v{vHdr}
    ds_read_b128 v[{vRec}:{vRec+3}], v{vList} offset:16
    """)
    for s in range(4):
        a(f"ds_read_b128 {vr(Qf+4*s,4)}, v{X+s}")
    a(f"""
    v_add_u32 v{vList}, 16, v{vList}
    s_waitcnt lgkmcnt(4)
    v_readfirstlane_b32 s{sNP}, v{T1}
    v_readfirstlane_b32 s{sHM}, v{T2}
    v_readfirstlane_b32 s{sB}, v{vRec}
    v_readfirstlane_b32 s{sREM}, v{vRec+1}
    v_readfirstlane_b32 s{sNV}, v{vRec+2}
    v_readfirstlane_b32 s{sZQ}, v{vRec+3}
    {"s_mov_b32 s%d, 0" % sHM if o.noserv else ""}
    s_cmp_eq_u32 s{sNP}, 0
    s_cbranch_scc1 L_end
    s_min_u32 s{sEVT}, s{sREM}, {o.kp}
    s_cmp_eq_u32 s{sHM}, 0
    s_cselect_b32 s{sEVT}, 0, s{sEVT}
    s_cmp_eq_u32 s{sZQ}, 0
    s_waitcnt lgkmcnt(0)
    s_cbranch_scc1 L_kv
    """)
    for i in range(16):
        a(f"v_mov_b32 v{Qf+i}, 0")
    a(f"""
L_kv:
    s_cmp_eq_u32 s{sREM}, s{sEVT}
    s_cbranch_scc1 L_service
L_kvbar:
    s_barrier
L_body:
    """)
    if not o.nocompute:
        for t in range(2):
            for s in range(4):
                off = f" offset:{4096*t}" if t else ""
                a(f"ds_read_b128 {vr(Kf+(t*4+s)*4,4)}, v{vKa+s}{off}")
        a(f"""
        v_max3_f32 v{T0}, v{S}, v{S+1}, v{S+2}
        v_max3_f32 v{T1}, v{S+3}, v{S+4}, v{S+5}
        v_max3_f32 v{T0}, v{T0}, v{S+6}, v{S+7}
        v_max_f32 v{T0}, v{T0}, v{T1}
        v_fma_f32 v{T1}, v{T0}, s{sC}, -v{MC}
        v_cmp_lt_f32 vcc, s{sTH}, v{T1}
        s_cbranch_vccnz L_rare
L_back:
        """)
        for j in range(8):
            a(f"v_fma_f32 v{X+j}, v{S+j}, s{sC}, -v{MC}")
        for j in range(8):
            a(f"v_exp_f32 v{X+j}, v{X+j}")
        a("s_nop 0")
        for j in range(4):
            a(f"v_cvt_pk_bf16_f32 v{P+j}, v{X+2*j}, v{X+2*j+1}")
        a(f"s_waitcnt lgkmcnt(0)")
        a(f"s_cmp_eq_u32 s{sREM}, 0")
        a(f"v_mfma_f32_16x16x32_bf16 {vr(L,4)}, {vr(ONES,4)}, {vr(P,4)}, {vr(L,4)}")
        for n in range(8):
            a(f"v_mfma_f32_16x16x32_bf16 {vr(O+4*n,4)}, {vr(Vf+4*n,4)}, {vr(P,4)}, {vr(O+4*n,4)}")
            a(f"ds_read_b64_tr_b16 {vr(Vf+4*n,2)}, v{vVa+n}")
            a(f"ds_read_b64_tr_b16 {vr(Vf+4*n+2,2)}, v{vVa+n} offset:4096")
        a(f"s_cbranch_scc1 L_fin")
        adv_slot_scalar()
        k = 0
        for s in range(4):
            for t in range(2):
                c = "0" if s == 0 else vr(S+4*t,4)
                a(f"v_mfma_f32_16x16x32_bf16 {vr(S+4*t,4)}, {vr(Kf+(t*4+s)*4,4)}, {vr(Qf+4*s,4)}, {c}")
                for _ in range(2):
                    if k < 12:
                        a(f"v_add_u32 v{vKa+k}, s{sDELTA}, v{vKa+k}"); k += 1
    else:
        a(f"""
L_back:
        s_cmp_eq_u32 s{sREM}, 0
        s_cbranch_scc1 L_fin
        """)
    a(f"""
    s_sub_u32 s{sREM}, s{sREM}, 1
    s_waitcnt lgkmcnt(0)
    s_cmp_lg_u32 s{sREM}, 0
    s_cbranch_scc1 L_kv
    s_cmp_ge_i32 s{sNV}, 32
    s_nop 7
    s_cbranch_scc1 L_body
    """)
    for t in range(2):
        for r in range(4):
            j = t*4 + r
            a(f"s_sub_u32 s{sT0}, s{sNV}, {16*t+r}")
            a(f"v_cmp_gt_i32 s[{sM0+2*j}:{sM0+2*j+1}], s{sT0}, v{vG4}")
    a("s_nop 1")
    for j in range(8):
        a(f"v_cndmask_b32 v{S+j}, v{vNinf}, v{S+j}, s[{sM0+2*j}:{sM0+2*j+1}]")
    a("s_branch L_body")
    a(f"""
L_rare:
    v_mov_b32 v{T1}, v{T0}
    s_nop 1
    v_permlane32_swap_b32 v{T0}, v{T1}
    s_nop 1
    v_max_f32 v{T0}, v{T0}, v{T1}
    v_mov_b32 v{T1}, v{T0}
    s_nop 1
    v_permlane16_swap_b32 v{T0}, v{T1}
    s_nop 1
    v_max_f32 v{T0}, v{T0}, v{T1}
    v_mul_f32 v{T0}, s{sC}, v{T0}
    v_max_f32 v{T0}, v{T0}, v{MC}
    v_sub_f32 v{T1}, v{MC}, v{T0}
    v_exp_f32 v{T1}, v{T1}
    v_mov_b32 v{MC}, v{T0}
    s_nop 0
    """)
    for i in range(33):
        a(f"v_mul_f32 v{O+i}, v{T1}, v{O+i}")
    a("s_branch L_back")
    a(f"""
L_service:
    s_mov_b32 s{sT3}, 0
L_service2:
    s_waitcnt vmcnt(0)
    v_cmp_ne_u32 s[{sPM}:{sPM+1}], v{vPoll}, v{vBase}
    v_readfirstlane_b32 s{sT2}, v{vPoll2}
    s_cmp_eq_u32 s{sCUR}, 0
    s_cbranch_scc1 L_sv_nofold
L_sv_fold:
    v_max_f32 v{T0}, v{MC}, v{PB+16}
    v_sub_f32 v{T1}, v{MC}, v{T0}
    v_sub_f32 v{T2}, v{PB+16}, v{T0}
    v_exp_f32 v{T1}, v{T1}
    v_exp_f32 v{T2}, v{T2}
    v_mov_b32 v{MC}, v{T0}
    s_ff1_i32_b32 s{sT0}, s{sCUR}
    s_bitset1_b32 s{sDONE}, s{sT0}
    s_bitset0_b32 s{sCUR}, s{sT0}
    v_mul_f32 v{T2}, v{T2}, v{PB+17}
    v_fma_f32 v{L}, v{L}, v{T1}, v{T2}
    s_cmp_eq_u32 s{sCUR}, 0
    """)
    for i in range(16):
        a(f"""
        v_lshlrev_b32 v{X}, 16, v{PB+i}
        v_and_b32 v{X+1}, s{sHI}, v{PB+i}
        v_mul_f32 v{O+2*i}, v{T1}, v{O+2*i}
        v_mul_f32 v{O+2*i+1}, v{T1}, v{O+2*i+1}
        v_fmac_f32 v{O+2*i}, v{T2}, v{X}
        v_fmac_f32 v{O+2*i+1}, v{T2}, v{X+1}
        """)
    a("s_cbranch_scc1 L_sv_nofold")
    for i in range(18):
        a(f"v_mov_b32 v{PB+i}, v{HB[0]+i}\nv_mov_b32 v{HB[0]+i}, v{HB[1]+i}")
    a(f"""
    s_branch L_sv_fold
L_sv_nofold:
    s_lshr_b32 s{sT0}, s{sT2}, s{sIDX}
    s_or_b32 s{sT0}, s{sT0}, s{sPM}
    s_and_b32 s{sT0}, s{sT0}, s{sHM}
    s_andn2_b32 s{sPV}, s{sT0}, s{sDONE}
    """)
    for buf in [PB] + HB:
        a(f"""
        s_cbranch_scc0 L_sv_noload
        s_ff1_i32_b32 s{sT1}, s{sPV}
        s_bitset1_b32 s{sCUR}, s{sT1}
        s_bitset0_b32 s{sPV}, s{sT1}
        s_mul_i32 s{sT1}, s{sT1}, {4*PSL}
        s_add_u32 s{sT1}, s{sT1}, s{sS0}
        s_add_u32 s{sT2}, s{sT1}, 4096
        """)
        for n in range(4):
            a(f"buffer_load_dwordx4 {vr(buf+4*n,4)}, v{vWsOff}, s[{sWS}:{sWS+3}], s{sT1} offen offset:{n*1024} sc1")
        a(f"""
        buffer_load_dwordx2 {vr(buf+16,2)}, v{vWsOff2}, s[{sWS}:{sWS+3}], s{sT2} offen sc1
        s_cmp_lg_u32 s{sPV}, 0
        """)
    a(f"""
L_sv_noload:
    s_or_b32 s{sT0}, s{sDONE}, s{sCUR}
    s_cmp_eq_u32 s{sT0}, s{sHM}
    s_cbranch_scc1 L_sv_ret
    s_andn2_b32 exec_lo, s{sHM}, s{sT0}
    s_mov_b32 exec_hi, 0
    buffer_load_dword v{vPoll}, v{vMb}, s[{sWS}:{sWS+3}], 0 offen sc1
    s_mov_b64 exec, -1
    s_and_b32 s{sT0}, s{sT3}, 7
    s_cmp_lg_u32 s{sT0}, 7
    s_cbranch_scc1 L_sv_ret
    buffer_load_dword v{vPoll2}, v{vDbg}, s[{sDBG}:{sDBG+3}], 0 offen sc1
L_sv_ret:
    s_cmp_gt_u32 s{sREM}, {o.kfast}
    s_cselect_b32 s{sT0}, {o.kstep}, {o.kstep2}
    s_sub_i32 s{sEVT}, s{sREM}, s{sT0}
    s_max_i32 s{sEVT}, s{sEVT}, 0
    s_cmp_eq_u32 s{sDONE}, s{sHM}
    s_cselect_b32 s{sEVT}, 0, s{sEVT}
    s_cmp_eq_u32 s{sT3}, 0
    s_cbranch_scc1 L_kvbar
L_own_wait:
    s_add_u32 s{sT3}, s{sT3}, 1
    s_cmp_gt_u32 s{sT3}, 0x8000
    s_cbranch_scc1 L_out
    s_cmp_lg_u32 s{sDONE}, s{sHM}
    s_cbranch_scc1 L_service2
    s_branch L_out
L_fin:
    s_mov_b32 s{sT3}, 1
    s_cmp_lg_u32 s{sDONE}, s{sHM}
    s_nop 6
    """)
    if o.stamps:
        stamp(3, vST)
        a(f"s_cmp_lg_u32 s{sDONE}, s{sHM}")
    a(f"""
    s_cbranch_scc1 L_service2
L_out:
    v_rcp_f32 v{T0}, v{L}
    s_lshl_b32 s{sT0}, s{sB}, 3
    s_add_u32 s{sT0}, s{sT0}, s{sH}
    s_lshl_b32 s{sT0}, s{sT0}, 2
    s_add_u32 s{sT0}, s{sT0}, s{sW}
    s_lshl_b32 s{sT0}, s{sT0}, 12
    s_cmp_eq_u32 s{sOWN}, 0
    """)
    for n in range(8):
        for r in range(4):
            a(f"v_mul_f32 v{O+4*n+r}, v{T0}, v{O+4*n+r}")
        a(f"v_cvt_pk_bf16_f32 v{PB+2*n}, v{O+4*n}, v{O+4*n+1}")
        a(f"v_cvt_pk_bf16_f32 v{PB+2*n+1}, v{O+4*n+2}, v{O+4*n+3}")
    a("s_cbranch_scc1 L_publish")
    for n in range(8):
        a(f"buffer_store_dwordx2 {vr(PB+2*n,2)}, v{vOutOff}, s[{sOUT}:{sOUT+3}], s{sT0} offen offset:{32*n} {o.outflags}")
    if o.stamps:
        a("s_waitcnt vmcnt(0)")
        stamp(4, vST)
    a(f"""
    s_endpgm
L_publish:
    v_mov_b32 v{PB+16}, v{MC}
    v_mov_b32 v{PB+17}, v{L}
    s_mul_i32 s{sT1}, s{sB}, {4*PSL}
    s_add_u32 s{sT1}, s{sT1}, s{sS0}
    s_add_u32 s{sT0}, s{sB}, s{sIDX}
    s_bitset1_b32 s{sALL}, s{sT0}
    s_bitset1_b32 s{sPK}, s{sB}
    s_add_u32 s{sPI}, s{sPI}, 1
    s_cmp_ge_u32 s{sPI}, s{sNP}
    s_cbranch_scc1 L_pub_now
    s_cmp_ge_u32 s{sNH}, 2
    s_cbranch_scc1 L_pub_now
    s_add_u32 s{sNH}, s{sNH}, 1
    s_mov_b32 s{sH1}, s{sH0}
    s_mov_b32 s{sH0}, s{sT1}
    """)
    for i in range(18):
        a(f"v_mov_b32 v{HB[1]+i}, v{HB[0]+i}\nv_mov_b32 v{HB[0]+i}, v{PB+i}")
    a(f"""
    s_waitcnt lgkmcnt(0)
    s_branch L_piece
L_pub_now:
    """)
    def pub(buf, sreg):
        if o.nopub: return
        a(f"s_add_u32 s{sT2}, s{sreg}, 4096")
        for n in range(4):
            a(f"buffer_store_dwordx4 {vr(buf+4*n,4)}, v{vWsOff}, s[{sWS}:{sWS+3}], s{sreg} offen offset:{n*1024} {o.pubflags}")
        a(f"buffer_store_dwordx2 {vr(buf+16,2)}, v{vWsOff2}, s[{sWS}:{sWS+3}], s{sT2} offen {o.pubflags}")
    pub(PB, sT1)
    a(f"""
    s_cmp_eq_u32 s{sNH}, 0
    s_cbranch_scc1 L_pub_flag
    """)
    pub(HB[0], sH0)
    a(f"""
    s_cmp_eq_u32 s{sNH}, 1
    s_cbranch_scc1 L_pub_flag
    """)
    pub(HB[1], sH1)
    a(f"""
L_pub_flag:
    v_add_u32 v{T0}, 1, v{vBase}
    v_mov_b32 v{T1}, s{sALL}
    s_mov_b32 s{sNH}, 0
    s_mov_b32 exec_hi, 0
    s_waitcnt vmcnt(0) lgkmcnt(0)
    s_mov_b32 exec_lo, s{sPK}
    buffer_store_dword v{T0}, v{vMb}, s[{sWS}:{sWS+3}], 0 offen sc1
    s_mov_b64 exec, -1
    s_mov_b32 s{sPK}, 0
    s_cmp_lt_u32 s{sPI}, s{sNP}
    s_cbranch_scc1 L_piece
    """)
    stamp(4, vST)
    a(f"""
    s_barrier
    s_cmp_lg_u32 s{sW}, 0
    s_cbranch_scc1 L_end
    s_mov_b64 exec, 1
    buffer_atomic_add v{T1}, v{vDbg}, s[{sDBG}:{sDBG+3}], 0 offen sc1
L_end:
    s_endpgm
.section .rodata,"a"
.p2align 6
.amdhsa_kernel {KN}_kernel
  .amdhsa_next_free_vgpr 256
  .amdhsa_next_free_sgpr 102
  .amdhsa_accum_offset 256
  .amdhsa_group_segment_fixed_size 0
  .amdhsa_kernarg_size 64
  .amdhsa_user_sgpr_count 2
  .amdhsa_user_sgpr_kernarg_segment_ptr 1
  .amdhsa_system_sgpr_workgroup_id_x 1
.end_amdhsa_kernel
""")
    return a.text(), LDS

if __name__ == "__main__":
    p = argparse.ArgumentParser()
    p.add_argument("-o", default="k.s")
    p.add_argument("--ns", type=int, default=5)
    p.add_argument("--lag", type=int, default=3)
    p.add_argument("--delta", type=int, default=6)
    p.add_argument("--thr", type=float, default=6.0)
    p.add_argument("--kp", type=int, default=6)
    p.add_argument("--kfast", type=int, default=0)
    p.add_argument("--kstep", type=int, default=2)
    p.add_argument("--kstep2", type=int, default=2)
    p.add_argument("--w1", type=float, default=6)
    p.add_argument("--w2", type=float, default=8)
    p.add_argument("--wh", type=float, default=6)
    p.add_argument("--boostat", type=int, default=8)
    p.add_argument("--kflags", default="nt")
    p.add_argument("--vflags", default="nt")
    p.add_argument("--nocompute", type=int, default=0)
    p.add_argument("--noserv", type=int, default=0)
    p.add_argument("--nopub", type=int, default=0)
    p.add_argument("--pubflags", default="sc1")
    p.add_argument("--outflags", default="")
    p.add_argument("--fastq", type=int, default=1)
    p.add_argument("--stamps", type=int, default=0)
    o = p.parse_args()
    t, lds = gen(o)
    open(o.o, "w").write(t)
    print(lds)
```

```python
import argparse, struct, math

KN = "standalone__paged_block_table_kv_pagedattention__sampling"

def f2u(f):
    return struct.unpack("<I", struct.pack("<f", f))[0]

class Asm:
    def __init__(self):
        self.lines = []
    def __call__(self, s):
        for l in s.strip("\n").split("\n"):
            l = l.strip()
            if not l: continue
            if l.endswith(":") or l.startswith("."):
                self.lines.append(l)
            else:
                self.lines.append("    " + l)
    def text(self):
        return "\n".join(self.lines) + "\n"

def vr(b, n=1):
    return f"v{b}" if n == 1 else f"v[{b}:{b+n-1}]"

def waits(w):
    base = int(math.floor(w)); frac = int(round((w - base) * 4))
    order = [0, 2, 1, 3]
    r = [base - 1] * 4
    for i in range(frac): r[order[i]] = base
    return r

def gen(o):
    NS = o.ns; LAG = o.lag; SLOT = 16384
    assert NS >= LAG + 1
    assert max(o.w1, o.w2, o.wh) <= 4 * LAG - 3
    LIST = NS * SLOT
    LDS = LIST + 512
    KVB = 4100 * 32768
    OOB = KVB
    PSL = 4736
    WSB = 8 * 32 * 4 * PSL
    ntk = (" " + o.kflags) if o.kflags else ""
    ntv = (" " + o.vflags) if o.vflags else ""
    a = Asm()
    hdr = open("cdna_kernels/%s.s.ref" % KN).read().split("\n")
    for l in hdr:
        if l.startswith("; @launch"): break
        a.lines.append(l)
    a.lines.append(f"; @launch grid=(256,1,1) block=(512,1,1) lds={LDS}")
    a(f"""
.amdgcn_target "amdgcn-amd-amdhsa--gfx950"
.text
.globl {KN}_kernel
.p2align 8
.type {KN}_kernel,@function
{KN}_kernel:
""")
    sH, sIDX, sW, sOWN = 24, 25, 26, 27
    sT0, sT1, sT2, sT3 = 28, 29, 30, 31
    sKA = 36
    sSTAMP = 92
    def srd(base, ptr, nbytes):
        a(f"""
        s_mov_b32 s{base}, s{ptr}
        s_and_b32 s{base+1}, s{ptr+1}, 0xffff
        s_mov_b32 s{base+2}, {hex(nbytes)}
        s_mov_b32 s{base+3}, 0x20000
        """)
    def stamp(k, vtmp, src=None):
        if not o.stamps: return
        if src is None:
            a("s_memrealtime s[96:97]\ns_waitcnt lgkmcnt(0)"); src = 96
        a(f"""
        v_mov_b32 v{vtmp}, s{src}
        v_mov_b32 v{vtmp+1}, s{src+1}
        s_lshl_b32 s98, s2, 3
        s_add_u32 s98, s98, s{sW}
        s_lshl_b32 s98, s98, 6
        s_add_u32 s98, s98, {400*1024*1024 + 8*k}
        v_mov_b32 v{vtmp+2}, 0
        s_mov_b64 exec, 1
        buffer_store_dwordx2 v[{vtmp}:{vtmp+1}], v{vtmp+2}, s[{sSTAMP}:{sSTAMP+3}], s98 offen
        s_mov_b64 exec, -1
        """)
    a(f"""
    s_cmp_ge_u32 s2, 256
    s_cbranch_scc1 L_end
    s_load_dwordx16 s[{sKA}:{sKA+15}], s[0:1], 0
    """)
    if o.stamps:
        a("s_memrealtime s[90:91]")
    a(f"""
    v_lshrrev_b32 v1, 6, v0
    s_and_b32 s{sH}, s2, 7
    v_readfirstlane_b32 s{sW}, v1
    s_bfe_u32 s{sIDX}, s2, 0x40003
    s_cmp_lt_u32 s2, 128
    s_cselect_b32 s{sOWN}, 1, 0
    v_and_b32 v1, 63, v0
    s_cmp_lt_u32 s{sW}, 4
    s_cbranch_scc1 L_consumer
    """)
    vG, vR, vRow, vKoff, vVoff, vQoff, vCL = 2, 3, 4, 5, 6, 7, 8
    vA, vB_, vCLE, vN, vN1, vS, vRm, vPE, vPS, vLen, vLen1, vStart, vFl, vF, vZQ = 9, 10, 11, 12, 13, 14, 15, 16, 17, 18, 19, 20, 21, 22, 23
    vE0, vE1 = 24, 25
    vBT = 26
    vAdd0 = 32; vAdd1 = 35; vBoff = 38; vFm1 = 41; vZero = 44; vQv = 45; vRel = 46; vTmp = 50
    vRecP = 56
    vSTp = 60
    sK, sV, sQ, sBT, sCLs = 4, 8, 12, 16, 20
    sPL, sPB, sE0, sE1, sCo, sCh, sMask, sFt, sCNT, sP0, sP1 = 32, 33, 34, 35, 52, 53, 54, 55, 56, 57, 58
    sX0, sX1, sX2, sX3, sX4, sX5, sBOOST = 59, 60, 61, 62, 63, 64, 65
    sMP = 66
    a(f"""
    v_lshrrev_b32 v{vG}, 4, v1
    v_and_b32 v{vR}, 15, v1
    s_sub_u32 s{sT0}, s{sW}, 4
    s_lshl_b32 s{sPB}, s{sT0}, 10
    s_lshl_b32 s{sT0}, s{sT0}, 2
    s_lshl_b32 s{sT1}, s{sH}, 8
    v_add_u32 v{vRow}, s{sT0}, v{vG}
    v_xor_b32 v{vA}, v{vR}, v{vRow}
    v_lshlrev_b32 v{vA}, 4, v{vA}
    v_lshl_add_u32 v{vQoff}, v{vRow}, 8, v{vA}
    v_lshl_add_u32 v{vKoff}, v{vRow}, 11, v{vA}
    v_add_u32 v{vKoff}, s{sT1}, v{vKoff}
    v_lshlrev_b32 v{vB_}, 2, v{vR}
    v_max_u32 v{vS}, 1, v1
    s_lshl_b32 s{sT0}, s{sIDX}, 10
    s_sub_u32 s{sT0}, s{sT0}, 8
    v_lshl_add_u32 v{vS}, v{vS}, 3, s{sT0}
    s_lshl_b32 s{sE0}, s{sIDX}, 3
    s_add_u32 s{sE0}, s{sE0}, s{sH}
    s_lshl_b32 s{sE0}, s{sE0}, 14
    s_mov_b32 m0, s{sPB}
    s_cmp_eq_u32 s{sOWN}, 0
    s_waitcnt lgkmcnt(0)
    """)
    srd_keep = lambda base, ptr, nbytes: a(f"""
        s_mov_b32 s{base}, s{ptr}
        s_mov_b32 s{base+1}, s{ptr+1}
        s_mov_b32 s{base+2}, {hex(nbytes)}
        s_mov_b32 s{base+3}, 0x20000
        """)
    srd_keep(sBT, sKA + 6, 16384)
    srd_keep(sCLs, sKA + 8, 64)
    srd_keep(sQ, sKA + 0, 2097152)
    a(f"""
    s_cbranch_scc1 L_p_help
    buffer_load_dwordx2 {vr(vBT,2)}, v{vS}, s[{sBT}:{sBT+3}], 0 offen
    buffer_load_dword v{vCL}, v{vB_}, s[{sCLs}:{sCLs+3}], 0 offen
    """)
    def issue_q(ws=None):
        for i in range(4):
            if i:
                a(f"s_add_u32 m0, s{sPB}, {4096*i}\ns_add_u32 s{sE0}, s{sE0}, 4096")
                if ws: a(f"s_waitcnt vmcnt({ws[i]})")
            a(f"buffer_load_dwordx4 v{vQoff}, s[{sQ}:{sQ+3}], s{sE0} offen lds")
    def issue_kv(ws=None):
        seq = [(vKoff, sK, sE0), (vKoff, sK, sE1), (vVoff, sV, sE0), (vVoff, sV, sE1)]
        for i, (vo, sd, so) in enumerate(seq):
            if i:
                a(f"s_add_u32 m0, s{sPB}, {4096*i}")
                a(f"s_waitcnt vmcnt({ws[i]})" if ws else "s_nop 0")
            a(f"buffer_load_dwordx4 v{vo}, s[{sd}:{sd+3}], s{so} offen{ntk if sd == sK else ntv} lds")
    def voff_v():
        a(f"""
        v_and_b32 v{vA}, 7, v{vRow}
        v_lshlrev_b32 v{vA}, 1, v{vA}
        v_xor_b32 v{vA}, v{vR}, v{vA}
        v_lshlrev_b32 v{vA}, 4, v{vA}
        v_lshl_add_u32 v{vVoff}, v{vRow}, 11, v{vA}
        v_add_u32 v{vVoff}, s{sT1}, v{vVoff}
        """)
    issue_q()
    srd_keep(sK, sKA + 2, 0 if o.fakekv else KVB)
    srd_keep(sV, sKA + 4, 0 if o.fakekv else KVB)
    voff_v()
    a(f"""
    s_add_u32 s{sPB}, s{sPB}, {SLOT}
    s_mov_b32 m0, s{sPB}
    s_waitcnt vmcnt(5)
    v_readlane_b32 s{sE0}, v{vBT}, 1
    v_readlane_b32 s{sE1}, v{vBT+1}, 1
    s_lshl_b32 s{sE0}, s{sE0}, 15
    s_lshl_b32 s{sE1}, s{sE1}, 15
    """)
    issue_kv()
    if o.stamps:
        srd(sSTAMP, sKA + 14, 537395200)
        stamp(5, vSTp)
    a(f"""
    s_add_u32 s{sPB}, s{sPB}, {SLOT}
    s_mov_b32 s{sPL}, 2
    s_mov_b32 s{sCNT}, {(2 - LAG) & 0xffffffff}
    s_waitcnt vmcnt({8 + (1 if o.stamps else 0)})
    s_branch L_p_build
L_p_help:
    buffer_load_dword v{vCL}, v{vB_}, s[{sCLs}:{sCLs+3}], 0 offen
    """)
    srd_keep(sK, sKA + 2, 0 if o.fakekv else KVB)
    srd_keep(sV, sKA + 4, 0 if o.fakekv else KVB)
    if o.stamps:
        srd(sSTAMP, sKA + 14, 537395200)
    voff_v()
    a(f"""
    s_mov_b32 s{sPL}, 0
    s_mov_b32 s{sCNT}, {(-LAG) & 0xffffffff}
    s_waitcnt vmcnt(0)
L_p_build:
    """)
    def scan(v):
        for sh in (1, 2, 4, 8):
            a(f"s_nop 1\nv_add_u32_dpp v{v}, v{v}, v{v} row_shr:{sh} row_mask:0xf bank_mask:0xf bound_ctrl:0")
    a(f"""
    v_cmp_gt_i32 vcc, 1, v{vCL}
    v_mov_b32 v{vA}, 0x1000
    v_min_i32 v{vCLE}, v{vA}, v{vCL}
    v_mov_b32 v{vZero}, 0
    v_cndmask_b32 v{vCLE}, v{vCLE}, v{vA}, vcc
    v_cndmask_b32 v{vZQ}, 0, 1, vcc
    v_add_u32 v{vN}, 31, v{vCLE}
    v_lshrrev_b32 v{vN}, 5, v{vN}
    v_add_u32 v{vN1}, 15, v{vCLE}
    v_mov_b32 v{vS}, v{vN}
    v_lshrrev_b32 v{vN1}, 5, v{vN1}
    """)
    scan(vS)
    a(f"""
    s_nop 0
    v_readlane_b32 s{sCo}, v{vS}, 15
    s_add_u32 s{sCo}, s{sCo}, {16*(o.delta + o.kappa) + 16}
    s_lshr_b32 s{sCo}, s{sCo}, 5
    s_min_u32 s{sCo}, s{sCo}, 128
    s_max_u32 s{sCo}, s{sCo}, 1
    v_subrev_u32 v{vRm}, s{sCo}, v{vN}
    v_max_i32 v{vRm}, 0, v{vRm}
    v_min_u32 v{vPE}, 1, v{vRm}
    v_mad_u32_u24 v{vPE}, v{vPE}, {o.kappa}, v{vRm}
    """)
    scan(vPE)
    a(f"""
    v_sub_u32 v{vPS}, v{vPE}, v{vRm}
    v_readlane_b32 s{sCh}, v{vPE}, 15
    s_mov_b32 s{sX5}, 0
    s_cmp_eq_u32 s{sOWN}, 0
    s_cbranch_scc1 L_p_bh
    v_min_u32 v{vLen}, s{sCo}, v{vN}
    v_cmp_eq_u32 vcc, s{sIDX}, v{vR}
    v_mov_b32 v{vStart}, 0
    v_readlane_b32 s{sX0}, v{vPS}, s{sIDX}
    v_readlane_b32 s{sX1}, v{vPE}, s{sIDX}
    v_cndmask_b32 v{vLen}, 0, v{vLen}, vcc
    v_mul_u32_u24 v{vA}, s{sCh}, v{vR}
    v_add_u32 v{vB_}, s{sCh}, v{vA}
    v_lshrrev_b32 v{vA}, 4, v{vA}
    v_lshrrev_b32 v{vB_}, 4, v{vB_}
    v_max_u32 v{vA}, s{sX0}, v{vA}
    v_min_u32 v{vB_}, s{sX1}, v{vB_}
    v_cmp_lt_u32 s[{sMP}:{sMP+1}], v{vA}, v{vB_}
    s_and_b32 s{sX5}, s{sMP}, 0xffff
    s_branch L_p_bj
L_p_bh:
    s_mul_i32 s{sP0}, s{sIDX}, s{sCh}
    s_add_u32 s{sP1}, s{sP0}, s{sCh}
    s_lshr_b32 s{sP0}, s{sP0}, 4
    s_lshr_b32 s{sP1}, s{sP1}, 4
    v_max_u32 v{vA}, s{sP0}, v{vPS}
    v_min_u32 v{vB_}, s{sP1}, v{vPE}
    v_sub_u32 v{vLen}, v{vB_}, v{vA}
    v_max_i32 v{vLen}, 0, v{vLen}
    v_sub_u32 v{vStart}, v{vA}, v{vPS}
    v_add_u32 v{vStart}, s{sCo}, v{vStart}
L_p_bj:
    v_sub_u32 v{vLen1}, v{vN1}, v{vStart}
    v_min_i32 v{vLen1}, v{vLen}, v{vLen1}
    v_cmp_lt_i32 vcc, 0, v{vLen}
    v_add_u32 v{vA}, v{vStart}, v{vLen}
    v_lshlrev_b32 v{vA}, 5, v{vA}
    v_cndmask_b32 v{vFl}, 0, 1, vcc
    s_and_b32 s{sMask}, vcc_lo, 0xffff
    v_add_u32 v{vFl}, v{vFl}, v{vLen}
    v_mov_b32 v{vF}, v{vFl}
    v_sub_u32 v{vRecP+2}, v{vCLE}, v{vA}
    v_add_u32 v{vRecP+2}, 32, v{vRecP+2}
    """)
    scan(vF)
    a(f"""
    v_mov_b32 v{vRecP}, v{vR}
    v_readlane_b32 s{sFt}, v{vF}, 15
    v_sub_u32 v{vF}, v{vF}, v{vFl}
    v_mov_b32 v{vRecP+1}, v{vLen}
    v_mov_b32 v{vRecP+3}, v{vZQ}
    s_max_u32 s{sFt}, s{sFt}, 1
    """)
    def tables(ts, tag):
        for t in ts:
            a(f"""
            v_mov_b32 v{vAdd0+t}, {hex(OOB)}
            v_mov_b32 v{vAdd1+t}, {hex(OOB)}
            v_mov_b32 v{vBoff+t}, 0x10000
            v_add_u32 v{vFm1+t}, {64*t-1}, v1
            """)
        a(f"""
        s_mov_b32 s{sX4}, s{sMask}
        s_cmp_eq_u32 s{sX4}, 0
        s_cbranch_scc1 L_p_tdone{tag}
L_p_tloop{tag}:
        s_ff1_i32_b32 s{sT0}, s{sX4}
        s_bitset0_b32 s{sX4}, s{sT0}
        v_readlane_b32 s{sX0}, v{vF}, s{sT0}
        v_readlane_b32 s{sX1}, v{vLen}, s{sT0}
        v_readlane_b32 s{sX2}, v{vLen1}, s{sT0}
        v_readlane_b32 s{sX3}, v{vStart}, s{sT0}
        s_lshl_b32 s{sT1}, s{sT0}, 3
        s_add_u32 s{sT1}, s{sT1}, s{sH}
        s_lshl_b32 s{sT1}, s{sT1}, 14
        s_or_b32 s{sT1}, s{sT1}, 1
        v_mov_b32 v{vQv}, s{sT1}
        s_lshl_b32 s{sT0}, s{sT0}, 10
        s_lshl_b32 s{sX3}, s{sX3}, 3
        s_add_u32 s{sT0}, s{sT0}, s{sX3}
        """)
        for t in ts:
            a(f"v_subrev_u32 v{vRel+t}, s{sX0}, v{vFm1+t}")
        for t in ts:
            a(f"""
            v_cmp_gt_u32 s[{sMP+6*t}:{sMP+6*t+1}], s{sX1}, v{vRel+t}
            v_cmp_gt_u32 s[{sMP+6*t+2}:{sMP+6*t+3}], s{sX2}, v{vRel+t}
            v_cmp_eq_u32 s[{sMP+6*t+4}:{sMP+6*t+5}], -1, v{vRel+t}
            v_lshl_add_u32 v{vTmp+t}, v{vRel+t}, 3, s{sT0}
            """)
        for t in ts:
            a(f"""
            v_cndmask_b32 v{vBoff+t}, v{vBoff+t}, v{vTmp+t}, s[{sMP+6*t}:{sMP+6*t+1}]
            v_cndmask_b32 v{vAdd0+t}, v{vAdd0+t}, v{vZero}, s[{sMP+6*t}:{sMP+6*t+1}]
            v_cndmask_b32 v{vAdd1+t}, v{vAdd1+t}, v{vZero}, s[{sMP+6*t+2}:{sMP+6*t+3}]
            v_cndmask_b32 v{vAdd0+t}, v{vAdd0+t}, v{vQv}, s[{sMP+6*t+4}:{sMP+6*t+5}]
            """)
        a(f"""
        s_cmp_lg_u32 s{sX4}, 0
        s_cbranch_scc1 L_p_tloop{tag}
L_p_tdone{tag}:
        """)
    tables([0], "a")
    a(f"""
    s_cmp_eq_u32 s{sOWN}, 0
    s_cbranch_scc0 L_p_nobt0
    buffer_load_dwordx2 {vr(vBT,2)}, v{vBoff}, s[{sBT}:{sBT+3}], 0 offen
L_p_nobt0:
    v_mbcnt_lo_u32_b32 v{vA}, s{sMask}, 0
    v_lshlrev_b32 v{vA}, 4, v{vA}
    v_add_u32 v{vA}, {LIST+16}, v{vA}
    s_bcnt1_i32_b32 s{sT0}, s{sMask}
    v_mov_b32 v{vTmp}, s{sT0}
    v_mov_b32 v{vTmp+1}, s{sX5}
    v_mov_b32 v{vB_}, {LIST}
    ds_write_b64 v{vB_}, {vr(vTmp,2)}
    s_cmp_eq_u32 s{sMask}, 0
    s_cbranch_scc1 L_p_norec
    s_mov_b32 exec_lo, s{sMask}
    s_mov_b32 exec_hi, 0
    ds_write_b128 v{vA}, {vr(vRecP,4)}
    s_mov_b64 exec, -1
L_p_norec:
    s_cmp_le_u32 s{sFt}, {64 - LAG}
    s_cbranch_scc1 L_p_not12
    """)
    tables([1, 2], "b")
    a(f"""
    buffer_load_dwordx2 {vr(vBT+2,2)}, v{vBoff+1}, s[{sBT}:{sBT+3}], 0 offen
    buffer_load_dwordx2 {vr(vBT+4,2)}, v{vBoff+2}, s[{sBT}:{sBT+3}], 0 offen
    s_waitcnt vmcnt(0)
L_p_not12:
    s_sub_u32 s{sBOOST}, s{sFt}, {o.boostat}
    s_cmp_eq_u32 s{sOWN}, 0
    s_cbranch_scc0 L_p_fix
    s_mov_b32 s{sBOOST}, -1
    s_waitcnt vmcnt(0)
L_p_fix:
    v_lshl_add_u32 v{vE0}, v{vBT}, 15, v{vAdd0}
    v_lshl_add_u32 v{vE1}, v{vBT+1}, 15, v{vAdd1}
    s_waitcnt lgkmcnt(0)
    """)
    stamp(1, vSTp)
    if o.stamps: a(f"s_cmp_eq_u32 s{sOWN}, 0")
    a(f"s_cbranch_scc1 L_p_loop_h")
    def ploop(tag, w, boost_to):
        ws = waits(w)
        a(f"""
L_p_loop_{tag}:
        v_readlane_b32 s{sE0}, v{vE0}, s{sPL}
        v_readlane_b32 s{sE1}, v{vE1}, s{sPL}
        s_add_u32 s{sPL}, s{sPL}, 1
        s_mov_b32 m0, s{sPB}
        s_cmp_lt_i32 s{sCNT}, 0
        s_waitcnt vmcnt({ws[0]})
        s_cbranch_scc1 L_p_nb_{tag}
        s_barrier
L_p_nb_{tag}:
        s_add_u32 s{sCNT}, s{sCNT}, 1
        s_cmp_eq_u32 s{sCNT}, s{sFt}
        s_cbranch_scc1 L_p_done
        s_bitcmp1_b32 s{sE0}, 0
        s_cbranch_scc1 L_p_q_{tag}
        """)
        issue_kv(ws)
        a(f"""
L_p_next_{tag}:
        s_add_u32 s{sPB}, s{sPB}, {SLOT}
        s_cmp_ge_u32 s{sPB}, {NS*SLOT}
        s_cselect_b32 s{sT0}, {NS*SLOT}, 0
        s_sub_u32 s{sPB}, s{sPB}, s{sT0}
        s_cmp_eq_u32 s{sPL}, 64
        s_cbranch_scc1 L_p_rot_{tag}
L_p_chk_{tag}:
        """)
        if boost_to:
            a(f"""
            s_cmp_lt_i32 s{sCNT}, s{sBOOST}
            s_cbranch_scc1 L_p_loop_{tag}
            s_branch L_p_loop_{boost_to}
            """)
        else:
            a(f"s_branch L_p_loop_{tag}")
        a(f"""
L_p_q_{tag}:
        s_sub_u32 s{sE0}, s{sE0}, 1
        """)
        issue_q(None if o.fastq else ws)
        a(f"""
        s_branch L_p_next_{tag}
L_p_rot_{tag}:
        v_lshl_add_u32 v{vE0}, v{vBT+2}, 15, v{vAdd0+1}
        v_lshl_add_u32 v{vE1}, v{vBT+3}, 15, v{vAdd1+1}
        v_mov_b32 v{vBT+2}, v{vBT+4}
        v_mov_b32 v{vBT+3}, v{vBT+5}
        v_mov_b32 v{vAdd0+1}, v{vAdd0+2}
        v_mov_b32 v{vAdd1+1}, v{vAdd1+2}
        s_mov_b32 s{sPL}, 0
        s_branch L_p_chk_{tag}
        """)
    ploop("o", o.w1, "b")
    ploop("b", o.w2, None)
    ploop("h", o.wh, None)
    a("L_p_done:")
    stamp(3, vSTp)
    a("s_endpgm")
    vLane, vG4, vTA, vTB = 1, 2, 3, 199
    vKa = 4; vVa = 8; Kf = 16; Vf = 48; Qf = 80; S = 96; P = 104; O = 108; L = 140; ONES = 144
    MC = 148; T0 = 149; X = 150; T1 = 158; T2 = 159; PB = 160; vPoll = 196; vOutOff = 197; vWsOff = 198
    vDbg = 200; vWsOff2 = 201; vMb = 202; vPoll2 = 203; vRec = 204; vNinf = 208; vList = 209; vBase = 210; vZ = 211; vST = 212; vHdr = 195; HB = [216, 234]; vOne = 194
    sWS, sOUT, sDBG = 4, 8, 12
    sC, sTH, sREM, sEVT, sSLOT, sDELTA, sNP, sHM = 16, 17, 18, 19, 20, 21, 22, 23
    sB, sNV, sDONE, sCUR, sPI, sZQ, sSL, sHI = 32, 33, 34, 35, 52, 53, 54, 55
    sM0 = 56
    sS0, sPF, sPV, sALL, sPM, sH0, sH1, sNH, sPK, sDRY = 72, 73, 74, 75, 76, 78, 79, 80, 81, 82
    cscale = math.log2(math.e) / math.sqrt(128.0)
    a(f"""
L_consumer:
    v_lshrrev_b32 v{vTA}, 4, v{vLane}
    v_lshlrev_b32 v{vG4}, 2, v{vTA}
    v_and_b32 v{vTB}, 15, v{vLane}
    v_mul_u32_u24 v{vMb}, {4*PSL}, v{vTB}
    s_lshl_b32 s{sT0}, s{sH}, 5
    s_add_u32 s{sT0}, s{sT0}, s{sIDX}
    s_lshl_b32 s{sT0}, s{sT0}, 2
    s_add_u32 s{sT0}, s{sT0}, s{sW}
    s_mul_i32 s{sS0}, s{sT0}, {PSL}
    s_add_u32 s{sT1}, s{sS0}, 4608
    v_xor_b32 v{vKa}, v{vTA}, v{vTB}
    v_lshlrev_b32 v{vKa}, 4, v{vKa}
    v_lshl_add_u32 v{vKa}, v{vTB}, 8, v{vKa}
    v_xor_b32 v{vKa+1}, 64, v{vKa}
    v_xor_b32 v{vKa+2}, 0x80, v{vKa}
    v_xor_b32 v{vKa+3}, 0xc0, v{vKa}
    v_lshlrev_b32 v{vOutOff}, 8, v{vTB}
    v_lshl_add_u32 v{vOutOff}, v{vTA}, 3, v{vOutOff}
    s_waitcnt lgkmcnt(0)
    """)
    srd(sWS, sKA + 14, WSB)
    a(f"""
    s_mov_b64 exec, 0xffff
    buffer_load_dword v{vBase}, v{vMb}, s[{sWS}:{sWS+3}], s{sT1} offen sc1
    s_mov_b64 exec, -1
    v_add_u32 v{vMb}, s{sT1}, v{vMb}
    v_lshlrev_b32 v{vWsOff}, 4, v{vLane}
    v_lshlrev_b32 v{vWsOff2}, 3, v{vLane}
    v_lshrrev_b32 v{vTA}, 2, v{vLane}
    v_and_b32 v{vTB}, 7, v{vTA}
    v_lshlrev_b32 v{vTB}, 5, v{vTB}
    v_lshl_add_u32 v{vVa}, v{vTA}, 8, v{vTB}
    v_and_b32 v{vTB}, 3, v{vLane}
    v_lshl_add_u32 v{vVa}, v{vTB}, 3, v{vVa}
    v_add_u32 v{vVa}, 0x2000, v{vVa}
    """)
    for n in range(1, 8):
        a(f"v_xor_b32 v{vVa+n}, {n*32}, v{vVa}")
    a(f"""
    s_lshl_b32 s{sT0}, s{sH}, 5
    v_mov_b32 v{vDbg}, s{sT0}
    v_mov_b32 v{vList}, {LIST}
    v_mov_b32 v{vHdr}, {LIST}
    v_mov_b32 v{vNinf}, 0xff800000
    v_mov_b32 v{vZ}, 0
    v_mov_b32 v{vPoll2}, 0
    s_mov_b32 s{sC}, {hex(f2u(cscale))}
    s_mov_b32 s{sTH}, {hex(f2u(o.thr))}
    s_mov_b32 s{sSLOT}, 0
    s_mov_b32 s{sSL}, {SLOT}
    s_mov_b32 s{sHI}, 0xffff0000
    s_mov_b32 s{sPI}, 0
    s_mov_b32 s{sNH}, 0
    s_mov_b32 s{sPK}, 0
    s_mov_b32 s{sALL}, 0
    s_mov_b32 s{sDONE}, 0
    s_mov_b32 s{sCUR}, 0
    """)
    for i in range(4):
        a(f"v_mov_b32 v{ONES+i}, 0x3f803f80")
    srd(sOUT, sKA + 10, 2097152)
    srd(sDBG, sKA + 12, 256)
    if o.stamps:
        srd(sSTAMP, sKA + 14, 537395200)
        stamp(0, vST, 90)
        stamp(1, vST)
    def init_state():
        for i in range(33):
            a(f"v_mov_b32 v{O+i}, 0")
        for i in range(32):
            a(f"v_mov_b32 v{Vf+i}, 0")
        for i in range(8):
            a(f"v_mov_b32 v{S+i}, v{vNinf}")
        a(f"v_mov_b32 v{MC}, {hex(f2u(-3.0e38))}")
    if o.dry:
        a(f"""
        s_mov_b32 s{sDRY}, 1
        s_mov_b32 s{sWS+2}, 0
        s_mov_b32 s{sOUT+2}, 0
        s_mov_b32 s{sDBG+2}, 0
        s_mov_b32 s{sHM}, 3
        s_mov_b32 s{sT3}, 1
        s_mov_b32 s{sREM}, 0
        s_mov_b32 s{sNP}, 0
        s_mov_b32 s{sNH}, 2
        s_mov_b32 s{sB}, 0
        s_mov_b32 s{sH0}, 0
        s_mov_b32 s{sH1}, 0
        v_mov_b32 v{vPoll2}, -1
        v_mov_b32 v{vPoll}, 0
        s_cmp_eq_u32 s{sOWN}, 0
        s_cbranch_scc1 L_publish
        s_branch L_service2
L_dry_done:
        s_mov_b32 s{sDRY}, 0
        s_mov_b32 s{sWS+2}, {hex(WSB)}
        s_mov_b32 s{sOUT+2}, 0x200000
        s_mov_b32 s{sDBG+2}, 256
        s_mov_b32 s{sPI}, 0
        s_mov_b32 s{sNH}, 0
        s_mov_b32 s{sPK}, 0
        s_mov_b32 s{sALL}, 0
        s_mov_b32 s{sDONE}, 0
        s_mov_b32 s{sCUR}, 0
        """)
    a(f"""
    s_waitcnt vmcnt(0)
    v_mov_b32 v{vPoll2}, 0
    v_mov_b32 v{vPoll}, v{vBase}
L_piece:
    """)
    init_state()
    a(f"""
    s_lshl_b32 s{sT0}, s{sW}, 12
    """)
    for s in range(4):
        a(f"v_add_u32 v{X+s}, s{sT0}, v{vKa+s}")
    def adv_slot_scalar():
        a(f"""
        s_add_u32 s{sSLOT}, s{sSLOT}, 1
        s_cmp_eq_u32 s{sSLOT}, {NS}
        s_cselect_b32 s{sSLOT}, 0, s{sSLOT}
        s_cselect_b32 s{sDELTA}, {hex((-(NS-1)*SLOT) & 0xffffffff)}, s{sSL}
        """)
    adv_slot_scalar()
    for i in range(12):
        a(f"v_add_u32 v{vKa+i}, s{sDELTA}, v{vKa+i}")
    a("s_barrier")
    stamp(2, vST)
    a(f"""
    ds_read_b64 v[{T1}:{T2}], v{vHdr}
    ds_read_b128 v[{vRec}:{vRec+3}], v{vList} offset:16
    """)
    for s in range(4):
        a(f"ds_read_b128 {vr(Qf+4*s,4)}, v{X+s}")
    a(f"""
    v_add_u32 v{vList}, 16, v{vList}
    s_waitcnt lgkmcnt(4)
    v_readfirstlane_b32 s{sNP}, v{T1}
    v_readfirstlane_b32 s{sHM}, v{T2}
    v_readfirstlane_b32 s{sB}, v{vRec}
    v_readfirstlane_b32 s{sREM}, v{vRec+1}
    v_readfirstlane_b32 s{sNV}, v{vRec+2}
    v_readfirstlane_b32 s{sZQ}, v{vRec+3}
    {"s_mov_b32 s%d, 0" % sHM if o.noserv else ""}
    s_cmp_eq_u32 s{sNP}, 0
    s_cbranch_scc1 L_end
    s_min_u32 s{sEVT}, s{sREM}, {o.kp}
    s_cmp_eq_u32 s{sHM}, 0
    s_cselect_b32 s{sEVT}, 0, s{sEVT}
    s_cmp_eq_u32 s{sZQ}, 0
    s_waitcnt lgkmcnt(0)
    s_cbranch_scc1 L_kv
    """)
    for i in range(16):
        a(f"v_mov_b32 v{Qf+i}, 0")
    a(f"""
L_kv:
    s_cmp_eq_u32 s{sREM}, s{sEVT}
    s_cbranch_scc1 L_service
L_kvbar:
    s_barrier
L_body:
    """)
    if not o.nocompute:
        for t in range(2):
            for s in range(4):
                off = f" offset:{4096*t}" if t else ""
                a(f"ds_read_b128 {vr(Kf+(t*4+s)*4,4)}, v{vKa+s}{off}")
        a(f"""
        v_max3_f32 v{T0}, v{S}, v{S+1}, v{S+2}
        v_max3_f32 v{T1}, v{S+3}, v{S+4}, v{S+5}
        v_max3_f32 v{T0}, v{T0}, v{S+6}, v{S+7}
        v_max_f32 v{T0}, v{T0}, v{T1}
        v_fma_f32 v{T1}, v{T0}, s{sC}, -v{MC}
        v_cmp_lt_f32 vcc, s{sTH}, v{T1}
        s_cbranch_vccnz L_rare
L_back:
        """)
        for j in range(8):
            a(f"v_fma_f32 v{X+j}, v{S+j}, s{sC}, -v{MC}")
        for j in range(8):
            a(f"v_exp_f32 v{X+j}, v{X+j}")
        a("s_nop 0")
        for j in range(4):
            a(f"v_cvt_pk_bf16_f32 v{P+j}, v{X+2*j}, v{X+2*j+1}")
        a(f"s_waitcnt lgkmcnt(0)")
        a(f"s_cmp_eq_u32 s{sREM}, 0")
        a(f"v_mfma_f32_16x16x32_bf16 {vr(L,4)}, {vr(ONES,4)}, {vr(P,4)}, {vr(L,4)}")
        for n in range(8):
            a(f"v_mfma_f32_16x16x32_bf16 {vr(O+4*n,4)}, {vr(Vf+4*n,4)}, {vr(P,4)}, {vr(O+4*n,4)}")
            a(f"ds_read_b64_tr_b16 {vr(Vf+4*n,2)}, v{vVa+n}")
            a(f"ds_read_b64_tr_b16 {vr(Vf+4*n+2,2)}, v{vVa+n} offset:4096")
        a(f"s_cbranch_scc1 L_fin")
        adv_slot_scalar()
        k = 0
        for s in range(4):
            for t in range(2):
                c = "0" if s == 0 else vr(S+4*t,4)
                a(f"v_mfma_f32_16x16x32_bf16 {vr(S+4*t,4)}, {vr(Kf+(t*4+s)*4,4)}, {vr(Qf+4*s,4)}, {c}")
                for _ in range(2):
                    if k < 12:
                        a(f"v_add_u32 v{vKa+k}, s{sDELTA}, v{vKa+k}"); k += 1
    else:
        a(f"""
L_back:
        s_cmp_eq_u32 s{sREM}, 0
        s_cbranch_scc1 L_fin
        """)
    a(f"""
    s_sub_u32 s{sREM}, s{sREM}, 1
    s_waitcnt lgkmcnt(0)
    s_cmp_lg_u32 s{sREM}, 0
    s_cbranch_scc1 L_kv
    s_cmp_ge_i32 s{sNV}, 32
    s_nop 7
    s_cbranch_scc1 L_body
    """)
    for t in range(2):
        for r in range(4):
            j = t*4 + r
            a(f"s_sub_u32 s{sT0}, s{sNV}, {16*t+r}")
            a(f"v_cmp_gt_i32 s[{sM0+2*j}:{sM0+2*j+1}], s{sT0}, v{vG4}")
    a("s_nop 1")
    for j in range(8):
        a(f"v_cndmask_b32 v{S+j}, v{vNinf}, v{S+j}, s[{sM0+2*j}:{sM0+2*j+1}]")
    a("s_branch L_body")
    a(f"""
L_rare:
    v_mov_b32 v{T1}, v{T0}
    s_nop 1
    v_permlane32_swap_b32 v{T0}, v{T1}
    s_nop 1
    v_max_f32 v{T0}, v{T0}, v{T1}
    v_mov_b32 v{T1}, v{T0}
    s_nop 1
    v_permlane16_swap_b32 v{T0}, v{T1}
    s_nop 1
    v_max_f32 v{T0}, v{T0}, v{T1}
    v_mul_f32 v{T0}, s{sC}, v{T0}
    v_max_f32 v{T0}, v{T0}, v{MC}
    v_sub_f32 v{T1}, v{MC}, v{T0}
    v_exp_f32 v{T1}, v{T1}
    v_mov_b32 v{MC}, v{T0}
    s_nop 0
    """)
    for i in range(33):
        a(f"v_mul_f32 v{O+i}, v{T1}, v{O+i}")
    a("s_branch L_back")
    a(f"""
L_service:
    s_mov_b32 s{sT3}, 0
L_service2:
    s_waitcnt vmcnt(0)
    v_cmp_ne_u32 s[{sPM}:{sPM+1}], v{vPoll}, v{vBase}
    v_readfirstlane_b32 s{sT2}, v{vPoll2}
    s_cmp_eq_u32 s{sT3}, 0
    s_cbranch_scc1 L_sv_nofold
    s_cmp_eq_u32 s{sNH}, 0
    s_cbranch_scc1 L_sv_nofold
    s_or_b32 s{sDONE}, s{sDONE}, s{sCUR}
    s_mov_b32 s{sCUR}, 0
L_sv_fold:
    v_max_f32 v{T0}, v{MC}, v{PB+16}
    v_sub_f32 v{T1}, v{MC}, v{T0}
    v_sub_f32 v{T2}, v{PB+16}, v{T0}
    v_exp_f32 v{T1}, v{T1}
    v_exp_f32 v{T2}, v{T2}
    v_mov_b32 v{MC}, v{T0}
    s_sub_u32 s{sNH}, s{sNH}, 1
    s_cmp_eq_u32 s{sNH}, 0
    v_mul_f32 v{L}, v{L}, v{T1}
    v_fmac_f32 v{L}, v{T2}, v{PB+17}
    """)
    for i in range(16):
        a(f"""
        v_lshlrev_b32 v{X}, 16, v{PB+i}
        v_and_b32 v{X+1}, s{sHI}, v{PB+i}
        v_mul_f32 v{O+2*i}, v{T1}, v{O+2*i}
        v_mul_f32 v{O+2*i+1}, v{T1}, v{O+2*i+1}
        v_fmac_f32 v{O+2*i}, v{T2}, v{X}
        v_fmac_f32 v{O+2*i+1}, v{T2}, v{X+1}
        """)
    a("s_cbranch_scc1 L_sv_nofold")
    for i in range(18):
        a(f"v_mov_b32 v{PB+i}, v{HB[0]+i}\nv_mov_b32 v{HB[0]+i}, v{HB[1]+i}")
    a(f"""
    s_branch L_sv_fold
L_sv_nofold:
    s_lshr_b32 s{sT0}, s{sT2}, s{sIDX}
    s_or_b32 s{sT0}, s{sT0}, s{sPM}
    s_and_b32 s{sT0}, s{sT0}, s{sHM}
    s_andn2_b32 s{sT0}, s{sT0}, s{sDONE}
    s_andn2_b32 s{sPV}, s{sT0}, s{sCUR}
    s_cmp_eq_u32 s{sNH}, 1
    s_cbranch_scc1 L_sv_ld1
    s_cmp_eq_u32 s{sNH}, 2
    s_cbranch_scc1 L_sv_ld2
    s_cmp_eq_u32 s{sNH}, 3
    s_cbranch_scc1 L_sv_noload
    """)
    for k, buf in enumerate([PB] + HB):
        a(f"""
L_sv_ld{k}:
        s_cmp_eq_u32 s{sPV}, 0
        s_cbranch_scc1 L_sv_noload
        s_ff1_i32_b32 s{sT1}, s{sPV}
        s_bitset1_b32 s{sCUR}, s{sT1}
        s_bitset0_b32 s{sPV}, s{sT1}
        s_mul_i32 s{sT1}, s{sT1}, {4*PSL}
        s_add_u32 s{sT1}, s{sT1}, s{sS0}
        s_add_u32 s{sT2}, s{sT1}, 4096
        s_mov_b32 s{sNH}, {k+1}
        """)
        for n in range(4):
            a(f"buffer_load_dwordx4 {vr(buf+4*n,4)}, v{vWsOff}, s[{sWS}:{sWS+3}], s{sT1} offen offset:{n*1024} sc1")
        a(f"buffer_load_dwordx2 {vr(buf+16,2)}, v{vWsOff2}, s[{sWS}:{sWS+3}], s{sT2} offen sc1")
    a(f"""
L_sv_noload:
    s_or_b32 s{sT0}, s{sDONE}, s{sCUR}
    s_cmp_eq_u32 s{sT0}, s{sHM}
    s_cbranch_scc1 L_sv_ret
    s_andn2_b32 exec_lo, s{sHM}, s{sT0}
    s_mov_b32 exec_hi, 0
    buffer_load_dword v{vPoll}, v{vMb}, s[{sWS}:{sWS+3}], 0 offen sc1
    s_mov_b64 exec, -1
    s_and_b32 s{sT0}, s{sT3}, 7
    s_cmp_lg_u32 s{sT0}, 7
    s_cbranch_scc1 L_sv_ret
    buffer_load_dword v{vPoll2}, v{vDbg}, s[{sDBG}:{sDBG+3}], 0 offen sc1
L_sv_ret:
    s_cmp_gt_u32 s{sREM}, {o.kfast}
    s_cselect_b32 s{sT0}, {o.kstep}, {o.kstep2}
    s_sub_i32 s{sEVT}, s{sREM}, s{sT0}
    s_max_i32 s{sEVT}, s{sEVT}, 0
    s_or_b32 s{sT0}, s{sDONE}, s{sCUR}
    s_cmp_eq_u32 s{sT0}, s{sHM}
    s_cselect_b32 s{sEVT}, 0, s{sEVT}
    s_cmp_eq_u32 s{sT3}, 0
    s_cbranch_scc1 L_kvbar
L_own_wait:
    s_add_u32 s{sT3}, s{sT3}, 1
    s_cmp_gt_u32 s{sT3}, 0x8000
    s_cbranch_scc1 L_out
    s_cmp_lg_u32 s{sDONE}, s{sHM}
    s_cbranch_scc1 L_service2
    s_branch L_out
L_fin:
    s_mov_b32 s{sT3}, 1
    s_cmp_lg_u32 s{sDONE}, s{sHM}
    s_nop 6
    """)
    if o.stamps:
        stamp(3, vST)
        a(f"s_cmp_lg_u32 s{sDONE}, s{sHM}")
    a(f"""
    s_cbranch_scc1 L_service2
L_out:
    {"s_memrealtime s[84:85]" if o.stamps else ""}
    s_cmp_eq_u32 s{sOWN}, 0
    s_cbranch_scc1 L_publish
    v_rcp_f32 v{T0}, v{L}
    s_lshl_b32 s{sT0}, s{sIDX}, 3
    s_add_u32 s{sT0}, s{sT0}, s{sH}
    s_lshl_b32 s{sT0}, s{sT0}, 2
    s_add_u32 s{sT0}, s{sT0}, s{sW}
    s_lshl_b32 s{sT0}, s{sT0}, 12
    """)
    for n in range(8):
        for r in range(4):
            a(f"v_mul_f32 v{O+4*n+r}, v{T0}, v{O+4*n+r}")
        a(f"v_cvt_pk_bf16_f32 v{PB+2*n}, v{O+4*n}, v{O+4*n+1}")
        a(f"v_cvt_pk_bf16_f32 v{PB+2*n+1}, v{O+4*n+2}, v{O+4*n+3}")
        a(f"buffer_store_dwordx2 {vr(PB+2*n,2)}, v{vOutOff}, s[{sOUT}:{sOUT+3}], s{sT0} offen offset:{32*n} {o.outflags}")
    if o.dry:
        a(f"s_cmp_eq_u32 s{sDRY}, 1\ns_cbranch_scc1 L_dry_done")
    if o.stamps:
        a("s_memrealtime s[86:87]")
        a("s_waitcnt vmcnt(0)")
        stamp(4, vST)
        stamp(5, vST, 84)
        stamp(6, vST, 86)
    a(f"""
    s_endpgm
L_publish:
    """)
    for i in range(16):
        a(f"v_cvt_pk_bf16_f32 v{PB+i}, v{O+2*i}, v{O+2*i+1}")
    a(f"""
    v_mov_b32 v{PB+16}, v{MC}
    v_mov_b32 v{PB+17}, v{L}
    s_mul_i32 s{sT1}, s{sB}, {4*PSL}
    s_add_u32 s{sT1}, s{sT1}, s{sS0}
    s_add_u32 s{sT0}, s{sB}, s{sIDX}
    s_bitset1_b32 s{sALL}, s{sT0}
    s_bitset1_b32 s{sPK}, s{sB}
    s_add_u32 s{sPI}, s{sPI}, 1
    s_cmp_ge_u32 s{sPI}, s{sNP}
    s_cbranch_scc1 L_pub_now
    s_cmp_ge_u32 s{sNH}, 2
    s_cbranch_scc1 L_pub_now
    s_add_u32 s{sNH}, s{sNH}, 1
    s_mov_b32 s{sH1}, s{sH0}
    s_mov_b32 s{sH0}, s{sT1}
    """)
    for i in range(18):
        a(f"v_mov_b32 v{HB[1]+i}, v{HB[0]+i}\nv_mov_b32 v{HB[0]+i}, v{PB+i}")
    a(f"""
    s_waitcnt lgkmcnt(0)
    s_branch L_piece
L_pub_now:
    """)
    def pub(buf, sreg):
        if o.nopub: return
        a(f"s_add_u32 s{sT2}, s{sreg}, 4096")
        for n in range(4):
            a(f"buffer_store_dwordx4 {vr(buf+4*n,4)}, v{vWsOff}, s[{sWS}:{sWS+3}], s{sreg} offen offset:{n*1024} {o.pubflags}")
        a(f"buffer_store_dwordx2 {vr(buf+16,2)}, v{vWsOff2}, s[{sWS}:{sWS+3}], s{sT2} offen {o.pubflags}")
    pub(PB, sT1)
    a(f"""
    s_cmp_eq_u32 s{sNH}, 0
    s_cbranch_scc1 L_pub_flag
    """)
    pub(HB[0], sH0)
    a(f"""
    s_cmp_eq_u32 s{sNH}, 1
    s_cbranch_scc1 L_pub_flag
    """)
    pub(HB[1], sH1)
    a(f"""
L_pub_flag:
    {"s_memrealtime s[86:87]" if o.stamps else ""}
    v_add_u32 v{T0}, 1, v{vBase}
    v_mov_b32 v{T1}, s{sALL}
    s_mov_b32 s{sNH}, 0
    s_mov_b32 exec_hi, 0
    s_waitcnt vmcnt(0) lgkmcnt(0)
    s_mov_b32 exec_lo, s{sPK}
    buffer_store_dword v{T0}, v{vMb}, s[{sWS}:{sWS+3}], 0 offen sc1
    s_mov_b64 exec, -1
    s_mov_b32 s{sPK}, 0
    s_cmp_lt_u32 s{sPI}, s{sNP}
    s_cbranch_scc1 L_piece
    """)
    if o.dry:
        a(f"s_cmp_eq_u32 s{sDRY}, 1\ns_cbranch_scc1 L_dry_done")
    stamp(4, vST)
    stamp(5, vST, 84)
    stamp(6, vST, 86)
    a(f"""
    s_barrier
    s_cmp_lg_u32 s{sW}, 0
    s_cbranch_scc1 L_end
    s_mov_b64 exec, 1
    buffer_atomic_add v{T1}, v{vDbg}, s[{sDBG}:{sDBG+3}], 0 offen sc1
L_end:
    s_endpgm
.section .rodata,"a"
.p2align 6
.amdhsa_kernel {KN}_kernel
  .amdhsa_next_free_vgpr 256
  .amdhsa_next_free_sgpr 102
  .amdhsa_accum_offset 256
  .amdhsa_group_segment_fixed_size 0
  .amdhsa_kernarg_size 64
  .amdhsa_user_sgpr_count 2
  .amdhsa_user_sgpr_kernarg_segment_ptr 1
  .amdhsa_system_sgpr_workgroup_id_x 1
.end_amdhsa_kernel
""")
    return a.text(), LDS

if __name__ == "__main__":
    p = argparse.ArgumentParser()
    p.add_argument("-o", default="k.s")
    p.add_argument("--ns", type=int, default=5)
    p.add_argument("--lag", type=int, default=3)
    p.add_argument("--delta", type=int, default=6)
    p.add_argument("--thr", type=float, default=6.0)
    p.add_argument("--kp", type=int, default=6)
    p.add_argument("--kfast", type=int, default=0)
    p.add_argument("--kstep", type=int, default=2)
    p.add_argument("--kstep2", type=int, default=2)
    p.add_argument("--w1", type=float, default=6)
    p.add_argument("--w2", type=float, default=8)
    p.add_argument("--wh", type=float, default=6)
    p.add_argument("--boostat", type=int, default=8)
    p.add_argument("--kflags", default="nt")
    p.add_argument("--vflags", default="nt")
    p.add_argument("--nocompute", type=int, default=0)
    p.add_argument("--noserv", type=int, default=0)
    p.add_argument("--nopub", type=int, default=0)
    p.add_argument("--pubflags", default="sc1")
    p.add_argument("--outflags", default="")
    p.add_argument("--fastq", type=int, default=1)
    p.add_argument("--dry", type=int, default=0)
    p.add_argument("--fakekv", type=int, default=0)
    p.add_argument("--kappa", type=int, default=2)
    p.add_argument("--stamps", type=int, default=0)
    o = p.parse_args()
    t, lds = gen(o)
    open(o.o, "w").write(t)
    print(lds)
```
